```python
import torch

def _softmax(x, axis=-1):
    return torch.softmax(x, dim=axis)
def _gelu(x):
    return torch.nn.functional.gelu(x, approximate="tanh")
def _silu(x):
    return torch.nn.functional.silu(x)
def _sigmoid(x):
    return torch.sigmoid(x)
def _layernorm(x, axis=-1, eps=1e-5):
    m = x.mean(dim=axis, keepdim=True)
    v = x.var(dim=axis, keepdim=True, unbiased=False)
    return (x - m) / torch.sqrt(v + eps)
def _scatter_add(tgt, idx, src, axis=0):
    return tgt.clone().index_add_(axis, idx, src)
def _segment_sum(src, seg, n):
    out = torch.zeros((n,) + src.shape[1:], dtype=src.dtype)
    return out.index_add_(0, seg, src)
def _pad(x, pw):
    flat = tuple(v for pair in reversed(pw) for v in pair)
    return torch.nn.functional.pad(x, flat)

kernel_name = 'sequential_preLN__spectral_gfnet__geglu_ffn__prompt'

def setup_inputs():

    _w = (lambda a: (lambda t: t.to(torch.bfloat16) if t.is_floating_point() else t)(torch.as_tensor(a)))
    def _A_setup():
        B, S, D = 1, 2048, 640
        Df = D // 2 + 1
        return {
            "x": _w((lambda *s: torch.randn(*s, dtype=torch.bfloat16) * 0.05)(B, S, D)),
            "w_r": _w((lambda *s: torch.randn(*s, dtype=torch.bfloat16) * 0.4)(S, Df) * 0.02),
            "w_i": _w((lambda *s: torch.randn(*s, dtype=torch.bfloat16) * 0.4)(S, Df) * 0.02),
        }
    _A_in = _A_setup()

    def _B_setup():
        B, S, D, F = 1, 2048, 640, 1536
        return {
            "x": _w((lambda *s: torch.randn(*s, dtype=torch.bfloat16) * 0.05)(B, S, D)),
            "w_gate": _w((lambda *s: torch.randn(*s, dtype=torch.bfloat16) * 0.05)(D, F)),
            "w_up": _w((lambda *s: torch.randn(*s, dtype=torch.bfloat16) * 0.05)(D, F)),
            "w_down": _w((lambda *s: torch.randn(*s, dtype=torch.bfloat16) * 0.05)(F, D)),
        }
    _B_in = _B_setup()

    return {
        "A_x": _A_in["x"],
        "A_w_r": _A_in["w_r"],
        "A_w_i": _A_in["w_i"],
        "B_x": _B_in["x"],
        "B_w_gate": _B_in["w_gate"],
        "B_w_up": _B_in["w_up"],
        "B_w_down": _B_in["w_down"],
    }

def reference(A_x, A_w_r, A_w_i, B_x, B_w_gate, B_w_up, B_w_down):
    def _A_ref(x, w_r, w_i):
        B, S, D = x.shape
        X = (lambda x, axes=(-2,-1): torch.fft.rfft2(x.float(), dim=axes))(x, axes=(-2, -1))
        W = w_r + 1j * w_i
        X = X * W
        y = (lambda x, s, axes=(-2,-1): torch.fft.irfft2(x, s=s, dim=axes).to(torch.bfloat16))(X, (S, D), axes=(-2, -1))
        return y

    def _B_ref(x, w_gate, w_up, w_down):
        return (_gelu(x @ w_gate) * (x @ w_up)) @ w_down

    x = A_x
    h = x + _A_ref(_layernorm(x, axis=-1), A_w_r, A_w_i)
    h2 = h + _B_ref(_layernorm(h, axis=-1), B_w_gate, B_w_up, B_w_down)
    return h2
```

```python
class Asm:
    def __init__(self):
        self.lines = []
    def __call__(self, s=""):
        for ln in s.split("\n"):
            self.lines.append("    " + ln.strip() if ln.strip() and not ln.strip().endswith(":") else ln.strip())
    def text(self):
        return "\n".join(self.lines) + "\n"

def vr(a, n=1):
    return f"v{a}" if n == 1 else f"v[{a}:{a+n-1}]"
def sr(a, n=1):
    return f"s{a}" if n == 1 else f"s[{a}:{a+n-1}]"

def kernel_head(e, name):
    e(f".globl {name}")
    e(".p2align 8")
    e(f".type {name},@function")
    e(f"{name}:")

def kd(name, vgpr, sgpr=102):
    acc = (vgpr + 3) // 4 * 4
    return f""".p2align 6
.amdhsa_kernel {name}
  .amdhsa_next_free_vgpr {vgpr}
  .amdhsa_next_free_sgpr {sgpr}
  .amdhsa_accum_offset {acc}
  .amdhsa_group_segment_fixed_size 0
  .amdhsa_kernarg_size 80
  .amdhsa_user_sgpr_count 2
  .amdhsa_user_sgpr_kernarg_segment_ptr 1
  .amdhsa_system_sgpr_workgroup_id_x 1
.end_amdhsa_kernel
"""

def srd(e, d, base, off, nbytes):
    if off:
        e(f"s_add_u32 s{d}, s{base}, {off}")
        e(f"s_addc_u32 s{d+1}, s{base+1}, 0")
    else:
        e(f"s_mov_b32 s{d}, s{base}")
        e(f"s_mov_b32 s{d+1}, s{base+1}")
    e(f"s_mov_b32 s{d+2}, {nbytes}")
    e(f"s_mov_b32 s{d+3}, 0x00020000")

WS_U = 0x000000; U_STRIDE = 1408; U_BYTES = 2048 * U_STRIDE
WS_V = 0x300000
WS_H = 0x600000; H_BYTES = 2048 * 1280
WS_LN2 = 0x900000
WS_A = 0xC00000; A_BYTES = 2048 * 3072
WS_WMAX = 0x1200000

class Stamps:
    def __init__(self, e, base=60, on=True):
        self.e, self.base, self.n, self.on = e, base, 0, on
    def __call__(self, real=False):
        if not self.on: return
        b = self.base + 2 * self.n
        self.e(f"s_memrealtime s[{b}:{b+1}]" if real else f"s_memtime s[{b}:{b+1}]")
        self.n += 1
    def dump(self, lbl, wg=0):
        if not self.on: return
        e = self.e
        e("s_waitcnt vmcnt(0) lgkmcnt(0)")
        e(f"s_cmp_lg_u32 s2, {wg}")
        e(f"s_cbranch_scc1 {lbl}_nodump")
        e("s_load_dwordx2 s[96:97], s[0:1], 64")
        e("s_waitcnt lgkmcnt(0)")
        e("s_mov_b32 s98, 256")
        e("s_mov_b32 s99, 0x00020000")
        e("v_lshrrev_b32 v1, 6, v0")
        e("v_lshlrev_b32 v1, 6, v1")
        e("v_and_b32 v2, 63, v0")
        e("v_cmp_eq_u32 vcc, 0, v2")
        e("s_and_saveexec_b64 s[94:95], vcc")
        for i in range(self.n):
            e(f"v_mov_b32 v3, s{self.base+2*i}")
            e(f"buffer_store_dword v3, v1, s[96:99], 0 offen offset:{4*i}")
        e("s_waitcnt vmcnt(0)")
        e("s_mov_b64 exec, s[94:95]")
        e(f"{lbl}_nodump:")
```

```python
from fw import *
from k2 import table_srd
from tables import NSTEP
import struct
def f2u(x): return struct.unpack("<I", struct.pack("<f", x))[0]
PITCH = 1552

def wave_sum(e, regs, tmp):
    n = len(regs)
    for sh in (8, 4, 2, 1):
        if n < 3: e(f"s_nop {2-n}")
        for r in regs:
            e(f"v_add_f32_dpp v{r}, v{r}, v{r} row_ror:{sh} row_mask:0xf bank_mask:0xf")
    for op in ("v_permlane16_swap_b32", "v_permlane32_swap_b32"):
        for i, r in enumerate(regs):
            e(f"v_mov_b32 v{tmp+i}, v{r}")
        e("s_nop 1")
        for i, r in enumerate(regs):
            e(f"{op} v{tmp+i}, v{r}")
        e("s_nop 0") if n < 2 else None
        for i, r in enumerate(regs):
            e(f"v_add_f32 v{r}, v{r}, v{tmp+i}")

def gmat(e, G, T, sb, conj_for_k3):
    sc = 1 / 32 ** 0.5
    e(f"s_mov_b32 s80, {f2u(1/2048):#x}")
    e(f"s_mov_b32 s81, {f2u(sc):#x}")
    for mo in range(2):
        for mi in range(2):
            for r in range(4):
                t = T + 4 * r
                e(f"v_add_u32 v{t}, {16*mo}, v4")
                e(f"v_lshl_add_u32 v{t+1}, v5, 2, {16*mi+r}")
                if not conj_for_k3:
                    e(f"v_lshl_add_u32 v{t+1}, v{t+1}, 6, s{sb}")
                    e(f"v_mul_u32_u24 v{t}, v{t}, v{t+1}")
                else:
                    e(f"v_lshl_add_u32 v{t}, v{t}, 6, s{sb}")
                    e(f"v_mul_u32_u24 v{t}, v{t}, v{t+1}")
                e(f"v_and_b32 v{t}, 2047, v{t}")
                e(f"v_cvt_f32_u32 v{t}, v{t}")
                e(f"v_mul_f32 v{t}, s80, v{t}")
                e(f"v_cos_f32 v{t+1}, v{t}")
                e(f"v_sin_f32 v{t+2}, v{t}")
            for r in range(4):
                t = T + 4 * r
                e(f"v_mul_f32 v{t+1}, s81, v{t+1}")
                e(f"v_mul_f32 v{t+2}, s81, v{t+2}")
            for r in range(4):
                t = T + 4 * r
                re = G + ((mo*2+0)*2+mi)*4 + r
                im = G + ((mo*2+1)*2+mi)*4 + r
                if not conj_for_k3:
                    e(f"v_cvt_pk_f16_f32 v{re}, v{t+1}, v{t+2}")
                    e(f"v_cvt_pk_f16_f32 v{im}, -v{t+2}, v{t+1}")
                else:
                    e(f"v_cvt_pk_f16_f32 v{re}, v{t+1}, -v{t+2}")
                    e(f"v_cvt_pk_f16_f32 v{im}, v{t+2}, v{t+1}")

def ln_rows(e, X, nrow, nel, T, S):
    SUM = T; TMP = T + nrow; MB = T + 2*nrow; SS = T + 3*nrow; DM = T + 4*nrow; RI = T + 5*nrow
    for r in range(nrow):
        x = X + r*nel
        e(f"v_add_f32 v{SUM+r}, v{x}, v{x+1}")
        for i in range(2, nel):
            e(f"v_add_f32 v{SUM+r}, v{SUM+r}, v{x+i}")
    wave_sum(e, [SUM+r for r in range(nrow)], TMP)
    e(f"s_mov_b32 s82, {f2u(1/640):#x}")
    for r in range(nrow):
        e(f"v_mul_f32 v{SUM+r}, s82, v{SUM+r}")
    for r in range(nrow):
        e(f"v_cvt_pk_bf16_f32 v{MB+r}, v{SUM+r}, v{SUM+r}")
    for r in range(nrow):
        e(f"v_and_b32 v{MB+r}, s{S}, v{MB+r}")
    for r in range(nrow):
        e(f"v_sub_f32 v{DM+r}, v{SUM+r}, v{MB+r}")
    for r in range(nrow):
        x = X + r*nel
        for i in range(nel):
            e(f"v_sub_f32 v{x+i}, v{x+i}, v{MB+r}")
        e(f"v_mul_f32 v{SS+r}, v{x}, v{x}")
        for i in range(1, nel):
            e(f"v_fmac_f32 v{SS+r}, v{x+i}, v{x+i}")
    wave_sum(e, [SS+r for r in range(nrow)], TMP)
    e(f"s_mov_b32 s83, {f2u(1e-5):#x}")
    for r in range(nrow):
        e(f"v_mul_f32 v{SS+r}, s82, v{SS+r}")
    for r in range(nrow):
        e(f"v_fma_f32 v{SS+r}, -v{DM+r}, v{DM+r}, v{SS+r}")
    for r in range(nrow):
        e(f"v_max_f32 v{SS+r}, 0, v{SS+r}")
    for r in range(nrow):
        e(f"v_cvt_pk_bf16_f32 v{SS+r}, v{SS+r}, v{SS+r}")
    for r in range(nrow):
        e(f"v_and_b32 v{SS+r}, s{S}, v{SS+r}")
    for r in range(nrow):
        e(f"v_add_f32 v{SS+r}, s83, v{SS+r}")
    for r in range(nrow):
        e(f"v_cvt_pk_bf16_f32 v{SS+r}, v{SS+r}, v{SS+r}")
    for r in range(nrow):
        e(f"v_and_b32 v{SS+r}, s{S}, v{SS+r}")
    for r in range(nrow):
        e(f"v_sqrt_f32 v{SS+r}, v{SS+r}")
    e("s_nop 0")
    for r in range(nrow):
        e(f"v_cvt_pk_bf16_f32 v{SS+r}, v{SS+r}, v{SS+r}")
    for r in range(nrow):
        e(f"v_and_b32 v{SS+r}, s{S}, v{SS+r}")
    for r in range(nrow):
        e(f"v_rcp_f32 v{RI+r}, v{SS+r}")
    e("s_nop 0")
    for r in range(nrow):
        x = X + r*nel
        for i in range(0, nel, 2):
            e(f"v_cvt_pk_bf16_f32 v{x+i}, v{x+i}, v{x+i+1}")
        for i in range(0, nel, 2):
            e(f"v_and_b32 v{x+i+1}, s{S}, v{x+i}")
            e(f"v_lshlrev_b32 v{x+i}, 16, v{x+i}")
        for i in range(nel):
            e(f"v_mul_f32 v{x+i}, v{x+i}, v{RI+r}")

def gen_k1(e, name="k1_kernel"):
    kernel_head(e, name)
    sX, sU, sT = 12, 16, 20
    e("s_cmp_ge_u32 s2, 256")
    e(f"s_cbranch_scc1 {name}_END")
    e("s_load_dwordx2 s[4:5], s[0:1], 0")
    e("s_load_dwordx2 s[8:9], s[0:1], 72")
    table_srd(e, sT, "rowtab", 11*21504)
    e("v_lshrrev_b32 v1, 6, v0")
    e("v_and_b32 v2, 63, v0")
    e("s_and_b32 s30, s2, 63")
    e("s_lshr_b32 s31, s2, 6")
    e("v_readfirstlane_b32 s33, v1")
    e("v_and_b32 v4, 15, v2")
    e("v_lshrrev_b32 v5, 4, v2")
    e("s_mul_i32 s34, s31, 3")
    e("s_add_u32 s34, s34, s33")
    e("s_cmp_lt_u32 s33, 3")
    e("s_cselect_b32 s35, 1, 0")
    e("s_cmp_lt_u32 s34, 11")
    e("s_cselect_b32 s35, s35, 0")
    e("v_lshlrev_b32 v6, 1, v2")
    e("v_sub_u32 v7, 768, v6")
    e("v_sub_u32 v8, 1280, v6")
    e("v_cmp_eq_u32 vcc, 0, v2")
    e("v_mov_b32 v9, 640")
    e("v_cndmask_b32 v8, v8, v9, vcc")
    e("s_waitcnt lgkmcnt(0)")
    srd(e, sX, 4, 0, H_BYTES)
    srd(e, sU, 8, WS_U, U_BYTES)
    XR = 16
    for r in range(4):
        e(f"s_lshl_b32 s36, s33, 8")
        e(f"s_add_u32 s36, s36, s30")
        e(f"s_add_u32 s36, s36, {64*r}")
        e(f"s_mul_i32 s36, s36, 1280")
        for q in range(5):
            e(f"buffer_load_ushort v{XR+10*r+2*q}, v6, s[{sX}:{sX+3}], s36 offen offset:{128*q}")
            if q == 0:
                e(f"buffer_load_ushort v{XR+10*r+1}, v8, s[{sX}:{sX+3}], s36 offen")
            else:
                e(f"buffer_load_ushort v{XR+10*r+2*q+1}, v7, s[{sX}:{sX+3}], s36 offen offset:{128*(4-q)}")
    TB = 128
    G = 64
    e("s_cmp_eq_u32 s35, 0")
    e(f"s_cbranch_scc1 {name}_notask0")
    e("v_lshlrev_b32 v3, 4, v2")
    e("s_mul_i32 s36, s34, 21504")
    for i in range(21):
        if i % 4 == 0 and i:
            e(f"s_add_u32 s36, s36, 4096")
        e(f"buffer_load_dwordx4 v[{TB+4*i}:{TB+4*i+3}], v3, s[{sT}:{sT+3}], s36 offen offset:{1024*(i%4)}")
    gmat(e, G, 96, 30, False)
    e("s_waitcnt vmcnt(21)")
    e(f"s_branch {name}_ln")
    e(f"{name}_notask0:")
    e("s_waitcnt vmcnt(0)")
    e(f"{name}_ln:")
    e("s_mov_b32 s40, 0xffff0000")
    for i in range(40):
        e(f"v_lshlrev_b32 v{XR+i}, 16, v{XR+i}")
    ln_rows(e, XR, 4, 10, 96, 40)
    e("v_and_b32 v10, 1, v2")
    e("v_mul_u32_u24 v10, 384, v10")
    e("v_and_b32 v11, 62, v2")
    e("v_add_u32 v10, v10, v11")
    e(f"s_mul_i32 s36, s33, {4*PITCH}")
    e("v_add_u32 v10, s36, v10")
    e("v_lshlrev_b32 v11, 1, v2")
    e("v_add_u32 v11, s36, v11")
    e("v_cmp_eq_u32 vcc, 0, v2")
    for r in range(4):
        x = XR + 10*r
        for q in range(5):
            e(f"v_cvt_pk_bf16_f32 v{x+2*q}, v{x+2*q}, v{x+2*q+1}")
        for q in range(5):
            e(f"v_and_b32 v{x+2*q+1}, s40, v{x+2*q}")
            e(f"v_lshlrev_b32 v{x+2*q}, 16, v{x+2*q}")
        e(f"v_cndmask_b32 v12, 0, v{x+1}, vcc")
        e(f"v_cndmask_b32 v13, v{x}, 0, vcc")
        e(f"v_cndmask_b32 v{x+1}, v{x+1}, 0, vcc")
        e(f"v_cvt_f16_f32 v12, v12")
        for q in range(5):
            lo = x+2*q; hi = x+2*q+1
            e(f"v_add_f32 v14, v{lo}, v{hi}")
            e(f"v_sub_f32 v15, v{13 if q == 0 else lo}, v{hi}")
            e(f"v_cvt_pk_f16_f32 v{lo}, v14, v15")
            e(f"ds_write_b16 v10, v{lo} offset:{r*PITCH + 64*q}")
            e(f"ds_write_b16_d16_hi v10, v{lo} offset:{r*PITCH + 64*q + 768}")
        e("s_mov_b64 exec, 0xffffffff")
        e(f"ds_write_b16 v11, v12 offset:{r*PITCH + 320}")
        e("s_mov_b64 exec, -1")
    e("s_waitcnt lgkmcnt(0)")
    e("s_barrier")
    e("s_cmp_eq_u32 s35, 0")
    e(f"s_cbranch_scc1 {name}_END")
    e(f"v_mul_u32_u24 v10, {PITCH}, v4")
    e("v_lshl_add_u32 v10, v5, 4, v10")
    D = 16
    AF = 96
    seq = [(g, t, mi) for g in range(4) for t in range(NSTEP[g]) for mi in range(2)]
    tb_index = {}
    k = 0
    for g in range(4):
        for t in range(NSTEP[g]):
            tb_index[(g, t)] = k; k += 1
    NB = 8
    def rd(i):
        g, t, mi = seq[i]
        a = AF + 4*(i % NB)
        e(f"ds_read_b128 v[{a}:{a+3}], v10 offset:{mi*16*PITCH + g*384 + 64*t}")
    for i in range(NB): rd(i)
    e("s_waitcnt vmcnt(0)")
    for i, (g, t, mi) in enumerate(seq):
        rem = min(NB - 1, len(seq) - 1 - i)
        e(f"s_waitcnt lgkmcnt({rem})")
        a = AF + 4*(i % NB); d = D + (g*2+mi)*4; tb = TB + 4*tb_index[(g, t)]
        e(f"v_mfma_f32_16x16x32_f16 v[{d}:{d+3}], v[{a}:{a+3}], v[{tb}:{tb+3}], {'0' if t == 0 else f'v[{d}:{d+3}]'}")
        if i + NB < len(seq): rd(i + NB)
    e("s_nop 7")
    BK, BM = 48, 56
    for mi in range(2):
        for r in range(4):
            ce, co, se, so = (D + (g*2+mi)*4 + r for g in range(4))
            e(f"v_add_f32 v96, v{ce}, v{co}")
            e(f"v_sub_f32 v97, v{ce}, v{co}")
            e(f"v_add_f32 v98, v{se}, v{so}")
            e(f"v_sub_f32 v99, v{se}, v{so}")
            e(f"v_cvt_pk_f16_f32 v{BK+4*mi+r}, v96, -v98")
            e(f"v_cvt_pk_f16_f32 v{BM+4*mi+r}, v97, v99")
    e("s_nop 1")
    O = 128
    for col, B in enumerate((BK, BM)):
        for mo in range(2):
            for ri in range(2):
                d = O + ((col*2+mo)*2+ri)*4
                for mi in range(2):
                    g = G + ((mo*2+ri)*2+mi)*4
                    e(f"v_mfma_f32_16x16x32_f16 v[{d}:{d+3}], v[{g}:{g+3}], v[{B+4*mi}:{B+4*mi+3}], {'0' if mi == 0 else f'v[{d}:{d+3}]'}")
    e("s_lshl_b32 s36, s34, 4")
    e("v_add_u32 v11, s36, v4")
    e("v_lshl_add_u32 v12, v5, 8, s30")
    e("v_mul_u32_u24 v12, 1408, v12")
    e("v_lshl_add_u32 v13, v11, 2, v12")
    e("v_sub_u32 v14, 320, v11")
    e("v_lshl_add_u32 v14, v14, 2, v12")
    e("v_cmp_lt_u32 vcc, 160, v11")
    e("v_mov_b32 v15, 0x80000000")
    e("v_cndmask_b32 v13, v13, v15, vcc")
    e("v_cndmask_b32 v14, v14, v15, vcc")
    e("s_nop 4")
    for col in range(2):
        for mo in range(2):
            for r in range(4):
                dr = O + ((col*2+mo)*2+0)*4 + r; di = O + ((col*2+mo)*2+1)*4 + r
                e(f"s_mov_b32 s36, {(16*mo+r)*64*1408}")
                e(f"v_cvt_pk_f16_f32 v{dr}, v{dr}, v{di}")
                e(f"buffer_store_dword v{dr}, v{13+col}, s[{sU}:{sU+3}], s36 offen")
    e(f"{name}_END:")
    e("s_endpgm")
    return name, 212
```

```python
from fw import *

def table_srd(e, d, label, nbytes, tmp=90):
    e(f"s_getpc_b64 s[{tmp}:{tmp+1}]")
    e(f"s_add_u32 s{d}, s{tmp}, {label}@rel32@lo+4")
    e(f"s_addc_u32 s{d+1}, s{tmp+1}, {label}@rel32@hi+12")
    e(f"s_mov_b32 s{d+2}, {nbytes}")
    e(f"s_mov_b32 s{d+3}, 0x00020000")

def gen_k2(e, name="k2_kernel"):
    kernel_head(e, name)
    sU, sV, sWr, sWi, sT = 12, 16, 20, 24, 28
    e("s_cmp_ge_u32 s2, 168")
    e(f"s_cbranch_scc1 {name}_END")
    e("s_load_dwordx4 s[4:7], s[0:1], 8")
    e("s_load_dwordx2 s[8:9], s[0:1], 72")
    table_srd(e, sT, "g64tab", 24576)
    e("v_lshrrev_b32 v1, 6, v0")
    e("v_and_b32 v2, 63, v0")
    e("v_lshlrev_b32 v3, 4, v2")
    C = 128
    for i in range(24):
        e(f"buffer_load_dwordx4 v[{C+4*i}:{C+4*i+3}], v3, s[{sT}:{sT+3}], 0 offen offset:{1024*(i%4)}" if i < 4 else
          f"buffer_load_dwordx4 v[{C+4*i}:{C+4*i+3}], v3, s[{sT}:{sT+3}], s{32+i//4} offen offset:{1024*(i%4)}") if False else None
    for i in range(1, 6):
        e(f"s_mov_b32 s{32+i}, {4096*i}")
    e("v_readfirstlane_b32 s33, v1") if False else None
    e("v_readfirstlane_b32 s39, v1")
    for i in range(24):
        so = "0" if i < 4 else f"s{32+i//4}"
        e(f"buffer_load_dwordx4 v[{C+4*i}:{C+4*i+3}], v3, s[{sT}:{sT+3}], {so} offen offset:{1024*(i%4)}")
    e("s_lshl_b32 s38, s2, 2")
    e("s_add_u32 s38, s38, s39")
    e("s_mul_i32 s39, s38, 3121")
    e("s_lshr_b32 s39, s39, 16")
    e("s_mul_i32 s40, s39, 21")
    e("s_sub_u32 s40, s38, s40")
    e("v_and_b32 v4, 15, v2")
    e("v_lshrrev_b32 v5, 4, v2")
    e("s_lshl_b32 s41, s40, 4")
    e("v_add_u32 v6, s41, v4")
    e("s_lshl_b32 s41, s39, 6")
    e("v_lshl_add_u32 v7, v5, 2, s41")
    e("v_mul_u32_u24 v7, 1408, v7")
    e("v_lshl_add_u32 v7, v6, 2, v7")
    e("v_lshl_add_u32 v8, v5, 7, s39")
    e("v_mul_u32_u24 v8, 642, v8")
    e("v_lshl_add_u32 v8, v6, 1, v8")
    e("v_cmp_lt_u32 vcc, 320, v6")
    e("v_mov_b32 v10, 0x80000000")
    e("v_cndmask_b32 v9, v7, v10, vcc")
    e("v_cndmask_b32 v8, v8, v10, vcc")
    e("v_mov_b32 v11, 2.0")
    e("v_cmp_eq_u32 vcc, 0, v6")
    e("s_nop 1")
    e("v_cndmask_b32 v11, v11, 1.0, vcc")
    e("v_cmp_eq_u32 vcc, 320, v6")
    e("s_nop 1")
    e("v_cndmask_b32 v11, v11, 1.0, vcc")
    SO_U, SO_W = 44, 60
    for i in range(16):
        mt4, r = i >> 2, i & 3
        e(f"s_mov_b32 s{SO_U+i}, {(16*mt4+r)*1408}")
        e(f"s_mov_b32 s{SO_W+i}, {(16*mt4+r)*32*642}")
    e("s_waitcnt lgkmcnt(0)")
    srd(e, sU, 8, WS_U, U_BYTES)
    srd(e, sV, 8, WS_V, U_BYTES)
    srd(e, sWr, 4, 0, 2048*642)
    srd(e, sWi, 6, 0, 2048*642)
    UD = 16
    WR, WI = 32, 48
    for i in range(16):
        e(f"buffer_load_dword v{UD+i}, v9, s[{sU}:{sU+3}], s{SO_U+i} offen")
    for i in range(16):
        e(f"buffer_load_ushort v{WR+i}, v8, s[{sWr}:{sWr+3}], s{SO_W+i} offen")
        e(f"buffer_load_ushort v{WI+i}, v8, s[{sWi}:{sWi+3}], s{SO_W+i} offen")
    e("s_mov_b32 s42, 0x05040100")
    e("s_mov_b32 s43, 0x07060302")
    BR, BI = 64, 72
    e("s_waitcnt vmcnt(32)")
    for i in range(8):
        e(f"v_perm_b32 v{BR+i}, v{UD+2*i+1}, v{UD+2*i}, s42")
        e(f"v_perm_b32 v{BI+i}, v{UD+2*i+1}, v{UD+2*i}, s43")
    DR, DI = 80, 96
    def cf(mat, mt4, t):
        b = C + 4 * ((mat * 4 + mt4) * 2 + t); return f"v[{b}:{b+3}]"
    def dft(inv):
        for mt4 in range(4):
            dr = f"v[{DR+4*mt4}:{DR+4*mt4+3}]"; di = f"v[{DI+4*mt4}:{DI+4*mt4+3}]"
            m_ri = 1 if inv else 2
            m_ir = 2 if inv else 1
            for t in range(2):
                br = f"v[{BR+4*t}:{BR+4*t+3}]"; bi = f"v[{BI+4*t}:{BI+4*t+3}]"
                e(f"v_mfma_f32_16x16x32_f16 {dr}, {cf(0,mt4,t)}, {br}, {dr if t else 0}")
                e(f"v_mfma_f32_16x16x32_f16 {di}, {cf(m_ir,mt4,t)}, {br}, {di if t else 0}")
                e(f"v_mfma_f32_16x16x32_f16 {dr}, {cf(m_ri,mt4,t)}, {bi}, {dr}")
                e(f"v_mfma_f32_16x16x32_f16 {di}, {cf(0,mt4,t)}, {bi}, {di}")
    e("s_nop 1")
    dft(False)
    e("s_waitcnt vmcnt(0)")
    for i in range(16):
        e(f"v_lshlrev_b32 v{WR+i}, 16, v{WR+i}")
        e(f"v_lshlrev_b32 v{WI+i}, 16, v{WI+i}")
        e(f"v_mul_f32 v{WR+i}, v11, v{WR+i}")
        e(f"v_mul_f32 v{WI+i}, v11, v{WI+i}")
    YR, YI = 16, 112
    for i in range(16):
        e(f"v_mul_f32 v{YR+i}, v{DR+i}, v{WR+i}")
        e(f"v_mul_f32 v{YI+i}, v{DR+i}, v{WI+i}")
    for i in range(16):
        e(f"v_fma_f32 v{YR+i}, -v{DI+i}, v{WI+i}, v{YR+i}")
        e(f"v_fmac_f32 v{YI+i}, v{DI+i}, v{WR+i}")
    for i in range(8):
        e(f"v_cvt_pk_f16_f32 v{BR+i}, v{YR+2*i}, v{YR+2*i+1}")
        e(f"v_cvt_pk_f16_f32 v{BI+i}, v{YI+2*i}, v{YI+2*i+1}")
    e("s_nop 1")
    dft(True)
    e("s_nop 7")
    for i in range(16):
        e(f"v_cvt_pk_f16_f32 v{UD+i}, v{DR+i}, v{DI+i}")
        e(f"buffer_store_dword v{UD+i}, v7, s[{sV}:{sV+3}], s{SO_U+i} offen")
    e(f"{name}_END:")
    e("s_endpgm")
    return name, 224
```

```python
from fw import *
from k2 import table_srd
from k1 import *
from tables import NSTEP
YP = 1296
YB = 32 * PITCH
K3_LDS = YB + 32 * YP

def gen_k3(e, name="k3_kernel"):
    kernel_head(e, name)
    sX, sV, sT, sH, sL = 12, 16, 20, 24, 28
    e("s_cmp_ge_u32 s2, 64")
    e(f"s_cbranch_scc1 {name}_END")
    e("s_load_dwordx2 s[4:5], s[0:1], 0")
    e("s_load_dwordx2 s[8:9], s[0:1], 72")
    table_srd(e, sT, "rowtab", 11*21504)
    e("v_lshrrev_b32 v1, 6, v0")
    e("v_and_b32 v2, 63, v0")
    e("s_mov_b32 s34, s2")
    e("v_readfirstlane_b32 s33, v1")
    e("v_and_b32 v4, 15, v2")
    e("v_lshrrev_b32 v5, 4, v2")
    e("s_waitcnt lgkmcnt(0)")
    srd(e, sX, 4, 0, H_BYTES)
    srd(e, sV, 8, WS_V, U_BYTES)
    srd(e, sH, 8, WS_H, H_BYTES)
    srd(e, sL, 8, WS_LN2, H_BYTES)
    e("v_lshl_add_u32 v6, v5, 8, s34")
    e("v_mul_u32_u24 v6, 1408, v6")
    e("v_lshl_add_u32 v6, v4, 2, v6")
    e("s_lshl_b32 s36, s33, 6")
    e("v_add_u32 v6, s36, v6")
    VD = 16
    for i in range(8):
        e(f"s_mov_b32 s{40+i}, {(16*(i>>2)+(i&3))*64*1408}")
    e("s_cmp_lt_u32 s33, 5")
    e("s_cselect_b32 s37, 0, 0x80000000")
    e("v_or_b32 v7, s37, v6")
    for tl in range(3):
        for i in range(8):
            e(f"buffer_load_dword v{VD+8*tl+i}, v{7 if tl == 2 else 6}, s[{sV}:{sV+3}], s{40+i} offen offset:{512*tl}")
    TB = 128
    e("v_lshlrev_b32 v3, 4, v2")
    def tb_load(i, sreg):
        e(f"buffer_load_dwordx4 v[{TB+4*i}:{TB+4*i+3}], v3, s[{sT}:{sT+3}], s{sreg+i//4} offen offset:{1024*(i%4)}")
    e("s_mul_i32 s50, s33, 21504")
    for i in range(1, 6): e(f"s_add_u32 s{50+i}, s50, {4096*i}")
    for i in range(6): e(f"s_add_u32 s{56+i}, s{50+i}, {8*21504}")
    for i in range(21): tb_load(i, 50)
    G = 64
    gmat(e, G, 96, 34, True)
    e("s_cmp_eq_u32 s33, 7")
    e(f"s_cbranch_scc0 {name}_l3")
    e("v_and_b32 v10, 31, v2")
    e(f"v_mul_u32_u24 v10, {PITCH}, v10")
    e("v_lshrrev_b32 v11, 5, v2")
    e("v_mul_u32_u24 v11, 24, v11")
    e("v_add_u32 v10, v10, v11")
    e("v_mov_b32 v12, 0")
    e("v_mov_b32 v13, 0")
    for i in range(3):
        e(f"ds_write_b64 v10, v[12:13] offset:{336+8*i}")
    e(f"{name}_l3:")
    e(f"v_mul_u32_u24 v10, {PITCH}, v4")
    e("v_lshl_add_u32 v10, v5, 2, v10")
    e("s_lshl_b32 s36, s33, 4")
    e("v_add_u32 v10, s36, v10")
    D = 40
    def phaseA(vd, toff):
        for no in range(2):
            for ri in range(2):
                d = D + (no*2+ri)*4
                for t in range(2):
                    g = G + ((no*2+ri)*2+t)*4
                    e(f"v_mfma_f32_16x16x32_f16 v[{d}:{d+3}], v[{vd+4*t}:{vd+4*t+3}], v[{g}:{g+3}], {'0' if t == 0 else f'v[{d}:{d+3}]'}")
        e("s_nop 7")
        for no in range(2):
            for ri in range(2):
                d = D + (no*2+ri)*4
                e(f"v_cvt_pk_f16_f32 v{d}, v{d}, v{d+2}")
                e(f"v_cvt_pk_f16_f32 v{d+1}, v{d+1}, v{d+3}")
                e(f"ds_write_b32 v10, v{d} offset:{no*16*PITCH + ri*768 + toff}")
                e(f"ds_write_b32 v10, v{d+1} offset:{no*16*PITCH + ri*768 + 384 + toff}")
    e("s_waitcnt vmcnt(37)")
    phaseA(VD, 0)
    e("s_waitcnt vmcnt(29)")
    phaseA(VD+8, 128)
    e("s_cmp_lt_u32 s33, 5")
    e(f"s_cbranch_scc0 {name}_adone")
    e("s_waitcnt vmcnt(21)")
    phaseA(VD+16, 256)
    e(f"{name}_adone:")
    e("s_waitcnt lgkmcnt(0)")
    e("s_barrier")
    e(f"v_mul_u32_u24 v10, {PITCH}, v4")
    e("v_lshl_add_u32 v10, v5, 4, v10")
    D = 16; AF = 96
    seq = [(g, t, mi) for g in range(4) for t in range(NSTEP[g]) for mi in range(2)]
    tb_index = {}; k = 0
    for g in range(4):
        for t in range(NSTEP[g]):
            tb_index[(g, t)] = k; k += 1
    NB = 8
    def rd(i):
        g, t, mi = seq[i]
        a = AF + 4*(i % NB)
        e(f"ds_read_b128 v[{a}:{a+3}], v10 offset:{mi*16*PITCH + g*384 + 64*t}")
    def phaseB(second, prefetch):
        for i in range(NB): rd(i)
        e("s_waitcnt vmcnt(0)")
        for i, (g, t, mi) in enumerate(seq):
            rem = min(NB - 1, len(seq) - 1 - i)
            e(f"s_waitcnt lgkmcnt({rem})")
            a = AF + 4*(i % NB); d = D + (g*2+mi)*4; tb = TB + 4*tb_index[(g, t)]
            e(f"v_mfma_f32_16x16x32_f16 v[{d}:{d+3}], v[{a}:{a+3}], v[{tb}:{tb+3}], {'0' if t == 0 else f'v[{d}:{d+3}]'}")
            if i + NB < len(seq): rd(i + NB)
            if prefetch and mi == 0 and tb_index[(g, t)] >= 1:
                tb_load(tb_index[(g, t)] - 1, 56)
        if prefetch:
            e("s_nop 1")
            tb_load(20, 56)
        e("s_lshl_b32 s36, s33, 4")
        if second: e("s_add_u32 s36, s36, 128")
        e("v_add_u32 v11, s36, v4")
        e(f"v_mul_u32_u24 v12, {4*YP}, v5")
        e(f"v_add_u32 v12, {YB}, v12")
        e("v_lshl_add_u32 v6, v11, 1, v12")
        e("v_lshlrev_b32 v13, 1, v11")
        e("v_sub_u32 v7, v12, v13")
        e("v_cmp_ge_u32 vcc, 160, v11")
        e("s_and_saveexec_b64 s[46:47], vcc")
        e("s_nop 3")
        for mi in range(2):
            for r in range(4):
                pe, po, qe, qo = (D + (g*2+mi)*4 + r for g in range(4))
                e(f"v_add_f32 v56, v{pe}, v{po}")
                e(f"v_sub_f32 v57, v{pe}, v{po}")
                e(f"v_add_f32 v58, v{qe}, v{qo}")
                e(f"v_sub_f32 v59, v{qe}, v{qo}")
                e(f"v_sub_f32 v60, v56, v58")
                e(f"v_add_f32 v61, v57, v59")
                e(f"v_sub_f32 v62, v57, v59")
                e(f"v_add_f32 v63, v56, v58")
                e(f"v_cvt_pk_bf16_f32 v{pe}, v60, v62")
                e(f"v_cvt_pk_bf16_f32 v{po}, v61, v63")
                ro = (16*mi + r) * YP
                e(f"ds_write_b16 v6, v{pe} offset:{ro}")
                e(f"ds_write_b16_d16_hi v6, v{pe} offset:{ro+640}")
                e(f"ds_write_b16 v7, v{po} offset:{ro+640}")
                e(f"ds_write_b16_d16_hi v7, v{po} offset:{ro+1280}")
        e("s_mov_b64 exec, s[46:47]")
    e("s_cmp_lt_u32 s33, 3")
    e(f"s_cbranch_scc1 {name}_b2")
    phaseB(False, False)
    e(f"s_branch {name}_bdone")
    e(f"{name}_b2:")
    phaseB(False, True)
    e("s_waitcnt lgkmcnt(0)")
    phaseB(True, False)
    e(f"{name}_bdone:")
    XR = 16
    e("v_lshlrev_b32 v6, 2, v2")
    for r in range(4):
        e(f"s_lshl_b32 s{36+r}, s33, 8")
        e(f"s_add_u32 s{36+r}, s{36+r}, s34")
        e(f"s_add_u32 s{36+r}, s{36+r}, {64*r}")
        e(f"s_mul_i32 s{36+r}, s{36+r}, 1280")
        for q in range(5):
            e(f"buffer_load_dword v{XR+5*r+q}, v6, s[{sX}:{sX+3}], s{36+r} offen offset:{256*q}")
    e("s_waitcnt lgkmcnt(0)")
    e("s_barrier")
    e(f"s_mul_i32 s48, s33, {4*YP}")
    e(f"s_add_u32 s48, s48, {YB}")
    e("v_add_u32 v7, s48, v6")
    YR = 40
    for r in range(4):
        for q in range(5):
            e(f"ds_read_b32 v{YR+5*r+q}, v7 offset:{r*YP + 256*q}")
    e("s_mov_b32 s49, 0xffff0000")
    e("s_waitcnt vmcnt(0) lgkmcnt(0)")
    H = 128
    for i in range(20):
        e(f"v_lshlrev_b32 v{H+2*i}, 16, v{XR+i}")
        e(f"v_and_b32 v{H+2*i+1}, s49, v{XR+i}")
        e(f"v_lshlrev_b32 v{XR+i}, 16, v{YR+i}")
        e(f"v_and_b32 v{YR+i}, s49, v{YR+i}")
        e(f"v_add_f32 v{H+2*i}, v{H+2*i}, v{XR+i}")
        e(f"v_add_f32 v{H+2*i+1}, v{H+2*i+1}, v{YR+i}")
        e(f"v_cvt_pk_bf16_f32 v{XR+i}, v{H+2*i}, v{H+2*i+1}")
    for r in range(4):
        for q in range(5):
            e(f"buffer_store_dword v{XR+5*r+q}, v6, s[{sH}:{sH+3}], s{36+r} offen offset:{256*q}")
    for i in range(20):
        e(f"v_lshlrev_b32 v{H+2*i}, 16, v{XR+i}")
        e(f"v_and_b32 v{H+2*i+1}, s49, v{XR+i}")
    ln_rows(e, H, 4, 10, 96, 49)
    for i in range(20):
        e(f"v_cvt_pk_bf16_f32 v{YR+i}, v{H+2*i}, v{H+2*i+1}")
    for r in range(4):
        for q in range(5):
            e(f"buffer_store_dword v{YR+5*r+q}, v6, s[{sL}:{sL+3}], s{36+r} offen offset:{256*q}")
    e(f"{name}_END:")
    e("s_endpgm")
    return name, 212
```

```python
from fw import *

def gen_k4(e, name="k4_kernel", nodma=False, nocomp=False, noepi=False, plainmap=False, stamps=False):
    st = Stamps(e, on=stamps)
    kernel_head(e, name)
    sA, sG, sU, sO = 12, 16, 20, 24
    e("s_cmp_ge_u32 s2, 256")
    e(f"s_cbranch_scc1 {name}_END")
    st(); st(True)
    e("s_load_dwordx4 s[4:7], s[0:1], 32")
    e("s_load_dwordx2 s[8:9], s[0:1], 72")
    e("s_and_b32 s28, s2, 7")
    e("s_lshr_b32 s29, s2, 3")
    e("s_lshr_b32 s30, s28, 1")
    e("s_lshl_b32 s30, s30, 2")
    e("s_and_b32 s31, s29, 3")
    e("s_add_u32 s30, s30, s31")
    e("s_and_b32 s31, s28, 1")
    e("s_lshl_b32 s31, s31, 3")
    e("s_lshr_b32 s32, s29, 2")
    e("s_add_u32 s31, s31, s32")
    if plainmap:
        e("s_and_b32 s30, s2, 15")
        e("s_lshr_b32 s31, s2, 4")
    e("v_lshrrev_b32 v1, 6, v0")
    e("v_and_b32 v2, 63, v0")
    e("s_nop 0")
    e("v_readfirstlane_b32 s33, v1")
    e("s_waitcnt lgkmcnt(0)")
    srd(e, sA, 8, WS_LN2, H_BYTES)
    srd(e, sG, 4, 0, 640 * 3072)
    srd(e, sU, 6, 0, 640 * 3072)
    srd(e, sO, 8, WS_A, A_BYTES)
    vOA = 3; vOB = 4
    e("v_lshrrev_b32 v8, 3, v2")
    e("v_and_b32 v9, 7, v2")
    e("v_xor_b32 v9, v9, v8")
    e("v_lshlrev_b32 v9, 4, v9")
    e("s_lshl_b32 s34, s33, 5")
    e("v_add_u32 v8, s34, v8")
    e("v_mul_u32_u24 v8, 1280, v8")
    e(f"v_add_u32 v{vOA}, v8, v9")
    e("s_mul_i32 s34, s33, 192")
    for j in range(3):
        e(f"v_add_u32 v8, s34, v2")
        if j: e(f"v_add_u32 v8, {64*j}, v8")
        e("v_mul_u32_u24 v9, 43691, v8")
        e("v_lshrrev_b32 v9, 19, v9")
        e("v_mul_u32_u24 v10, 12, v9")
        e("v_sub_u32 v10, v8, v10")
        e("v_lshrrev_b32 v11, 2, v9")
        e("v_and_b32 v11, 2, v11")
        e("v_xor_b32 v10, v10, v11")
        e("v_lshlrev_b32 v10, 4, v10")
        e("v_mul_u32_u24 v9, 3072, v9")
        e(f"v_add_u32 v{vOB+j}, v9, v10")
    e("s_mul_i32 s34, s30, 163840")
    e("s_mul_i32 s35, s31, 192")
    e("s_lshl_b32 s36, s33, 12")
    e("s_mul_i32 s37, s33, 3072")
    e("s_add_u32 s37, s37, 16384")
    vRA0, vRA1, vP0, vP1 = 12, 13, 14, 15
    e("v_and_b32 v8, 15, v2")
    e("v_lshrrev_b32 v9, 4, v2")
    e("s_and_b32 s38, s33, 1")
    e("s_lshr_b32 s39, s33, 1")
    e("v_and_b32 v10, 7, v8")
    e("v_xor_b32 v10, v10, v9")
    e("v_lshlrev_b32 v10, 4, v10")
    e("v_lshlrev_b32 v11, 7, v8")
    e("v_add_u32 v10, v10, v11")
    e("s_lshl_b32 s40, s38, 13")
    e(f"v_add_u32 v{vRA0}, s40, v10")
    e(f"v_xor_b32 v{vRA1}, 64, v{vRA0}")
    e("v_lshrrev_b32 v10, 2, v8")
    e("v_lshl_add_u32 v10, v9, 3, v10")
    e("v_mul_u32_u24 v10, 192, v10")
    e("v_and_b32 v11, 3, v8")
    e("v_lshl_add_u32 v10, v11, 3, v10")
    e("s_mul_i32 s40, s39, 96")
    e("s_add_u32 s40, s40, 16384")
    e("v_add_u32 v10, s40, v10")
    e("v_and_b32 v11, 1, v9")
    e("v_lshlrev_b32 v11, 5, v11")
    e("s_cmp_eq_u32 s39, 0")
    e("s_cselect_b32 s40, 1, -1")
    e("v_mul_i32_i24 v11, s40, v11")
    e(f"v_add_u32 v{vP0}, v10, v11")
    e(f"v_sub_u32 v{vP1}, v10, v11")
    ACC = 128
    for i in range(96):
        e(f"v_mov_b32 v{ACC+i}, 0")
    STG = 40960
    def dma(kc):
        if nodma: return
        buf = (kc % 3) * STG
        for j in range(4):
            e(f"s_add_u32 m0, s36, {buf + 1024*j}")
            e(f"s_add_u32 s41, s34, {j*10240 + kc*128}")
            e(f"buffer_load_dwordx4 v{vOA}, s[{sA}:{sA+3}], s41 offen lds")
        e(f"s_add_u32 s41, s35, {kc*64*3072}")
        for j in range(3):
            e(f"s_add_u32 m0, s37, {buf + 1024*j}")
            e("s_nop 0")
            e(f"buffer_load_dwordx4 v{vOB+j}, s[{sG}:{sG+3}], s41 offen lds")
        for j in range(3):
            e(f"s_add_u32 m0, s37, {buf + 12288 + 1024*j}")
            e("s_nop 0")
            e(f"buffer_load_dwordx4 v{vOB+j}, s[{sU}:{sU+3}], s41 offen lds")
    FX, FY = 32, 72
    def reads(F, s):
        if nocomp: return
        ra = vRA1 if s else vRA0
        for i in range(4):
            e(f"ds_read_b128 v[{F+4*i}:{F+4*i+3}], v{ra+4} offset:{2048*i}")
        for gu in range(2):
            for tt in range(3):
                p = vP1 if (tt & 1) else vP0
                base = F + 16 + (gu*3+tt)*4
                for h2 in range(2):
                    off = 32*tt + 6144*s + 768*h2 + 12288*gu
                    e(f"ds_read_b64_tr_b16 v[{base+2*h2}:{base+2*h2+1}], v{p+4} offset:{off}")
    def mfmas(F):
        if nocomp: return
        for i in range(4):
            for gu in range(2):
                for tt in range(3):
                    d = ACC + ((i*2+gu)*3+tt)*4
                    w = F + 16 + (gu*3+tt)*4
                    e(f"v_mfma_f32_16x16x32_bf16 v[{d}:{d+3}], v[{w}:{w+3}], v[{F+4*i}:{F+4*i+3}], v[{d}:{d+3}]")
    st()
    dma(0); dma(1)
    for it in range(10):
        buf = (it % 3) * STG
        for r in (vRA0, vRA1, vP0, vP1):
            e(f"v_add_u32 v{r+4}, {buf}, v{r}")
        e(f"s_waitcnt vmcnt({10 if it < 9 else 0})")
        e("s_barrier")
        if it in (0, 1, 5): st()
        reads(FX, 0)
        if it + 2 < 10: dma(it + 2)
        reads(FY, 1)
        e("s_waitcnt lgkmcnt(15)")
        mfmas(FX)
        e("s_waitcnt lgkmcnt(0)")
        mfmas(FY)
    st()
    if noepi:
        e("s_endpgm")
    e("v_and_b32 v8, 15, v2")
    e("v_lshrrev_b32 v9, 4, v2")
    e("s_lshl_b32 s40, s30, 7")
    e("s_lshl_b32 s41, s38, 6")
    e("s_add_u32 s40, s40, s41")
    e("v_add_u32 v8, s40, v8")
    e("v_mul_u32_u24 v8, 3072, v8")
    e("s_mul_i32 s40, s31, 192")
    e("s_mul_i32 s41, s39, 96")
    e("s_add_u32 s40, s40, s41")
    e("v_lshl_add_u32 v8, v9, 3, v8")
    e("v_add_u32 v8, s40, v8")
    c1 = -2.0 * 1.4426950408889634 * 0.7978845608028654
    import struct
    def f2u(x): return struct.unpack("<I", struct.pack("<f", x))[0]
    e(f"s_mov_b32 s42, {f2u(c1):#x}")
    e(f"s_mov_b32 s43, {f2u(c1*0.044715):#x}")
    e("s_mov_b32 s44, 0xffff0000")
    e("s_nop 7")
    T = 32
    for i in range(4):
        e(f"s_mov_b32 s45, {i*16*3072}")
        for tt in range(3):
            g = ACC + ((i*2+0)*3+tt)*4
            u = ACC + ((i*2+1)*3+tt)*4
            e(f"v_cvt_pk_bf16_f32 v{T}, v{g}, v{g+1}")
            e(f"v_cvt_pk_bf16_f32 v{T+1}, v{g+2}, v{g+3}")
            e(f"v_cvt_pk_bf16_f32 v{T+2}, v{u}, v{u+1}")
            e(f"v_cvt_pk_bf16_f32 v{T+3}, v{u+2}, v{u+3}")
            for r in range(4):
                src = T + (r >> 1)
                if r & 1: e(f"v_and_b32 v{T+4+r}, s44, v{src}")
                else: e(f"v_lshlrev_b32 v{T+4+r}, 16, v{src}")
                src = T + 2 + (r >> 1)
                if r & 1: e(f"v_and_b32 v{T+8+r}, s44, v{src}")
                else: e(f"v_lshlrev_b32 v{T+8+r}, 16, v{src}")
            for r in range(4):
                x = T + 4 + r
                e(f"v_mul_f32 v{T+12+r}, v{x}, v{x}")
            for r in range(4):
                e(f"v_mov_b32 v{T+16+r}, s42")
                e(f"v_fmac_f32 v{T+16+r}, s43, v{T+12+r}")
            for r in range(4):
                e(f"v_mul_f32 v{T+16+r}, v{T+4+r}, v{T+16+r}")
            for r in range(4):
                e(f"v_exp_f32 v{T+16+r}, v{T+16+r}")
            e("s_nop 0")
            for r in range(4):
                e(f"v_add_f32 v{T+16+r}, 1.0, v{T+16+r}")
            for r in range(4):
                e(f"v_rcp_f32 v{T+16+r}, v{T+16+r}")
            e("s_nop 0")
            for r in range(4):
                e(f"v_mul_f32 v{T+16+r}, v{T+4+r}, v{T+16+r}")
            e(f"v_cvt_pk_bf16_f32 v{T}, v{T+16}, v{T+17}")
            e(f"v_cvt_pk_bf16_f32 v{T+1}, v{T+18}, v{T+19}")
            for r in range(4):
                src = T + (r >> 1)
                if r & 1: e(f"v_and_b32 v{T+16+r}, s44, v{src}")
                else: e(f"v_lshlrev_b32 v{T+16+r}, 16, v{src}")
            for r in range(4):
                e(f"v_mul_f32 v{T+16+r}, v{T+16+r}, v{T+8+r}")
            o = 64 + 2 * ((i*3+tt) % 8)
            e(f"v_cvt_pk_bf16_f32 v{o}, v{T+16}, v{T+17}")
            e(f"v_cvt_pk_bf16_f32 v{o+1}, v{T+18}, v{T+19}")
            e(f"buffer_store_dwordx2 v[{o}:{o+1}], v8, s[{sO}:{sO+3}], s45 offen offset:{32*tt}")
    st()
    e("s_waitcnt vmcnt(0)")
    st(); st(True)
    st.dump(name)
    e(f"{name}_END:")
    e("s_endpgm")
    return name, 224

def gen_k5(e):
    name = "k5_kernel"
    kernel_head(e, name)
    sA, sW, sH, sO = 12, 16, 20, 24
    e("s_cmp_ge_u32 s2, 256")
    e("s_cbranch_scc1 K5_END")
    e("s_load_dwordx4 s[4:7], s[0:1], 48")
    e("s_load_dwordx2 s[8:9], s[0:1], 72")
    e("s_and_b32 s28, s2, 7")
    e("s_lshr_b32 s29, s2, 3")
    e("s_lshl_b32 s30, s28, 2")
    e("s_and_b32 s31, s29, 3")
    e("s_add_u32 s30, s30, s31")
    e("s_lshr_b32 s31, s29, 2")
    e("v_lshrrev_b32 v1, 6, v0")
    e("v_and_b32 v2, 63, v0")
    e("s_nop 0")
    e("v_readfirstlane_b32 s33, v1")
    e("s_waitcnt lgkmcnt(0)")
    srd(e, sA, 8, WS_A, A_BYTES)
    srd(e, sW, 4, 0, 1536 * 1280)
    srd(e, sH, 8, WS_H, H_BYTES)
    srd(e, sO, 6, 0, H_BYTES)
    vOA = 3; vOW = 4
    vRW = 10
    e("v_and_b32 v11, 15, v2")
    e("v_lshrrev_b32 v12, 4, v2")
    e("s_lshl_b32 s34, s30, 6")
    e("v_add_u32 v13, s34, v11")
    e("v_mul_u32_u24 v13, 3072, v13")
    e("v_lshl_add_u32 v13, v12, 4, v13")
    e("s_mul_i32 s34, s33, 768")
    e(f"v_add_u32 v{vOA}, s34, v13")
    for j in range(5):
        e(f"v_add_u32 v13, {64*j}, v2")
        e("v_mul_u32_u24 v14, 52429, v13")
        e("v_lshrrev_b32 v14, 19, v14")
        e("v_mul_u32_u24 v15, 10, v14")
        e("v_sub_u32 v15, v13, v15")
        e("v_lshlrev_b32 v15, 4, v15")
        e("v_mul_u32_u24 v14, 1280, v14")
        e(f"v_add_u32 v{vOW+j}, v14, v15")
    e("s_mul_i32 s34, s33, 491520")
    e("s_mul_i32 s35, s31, 160")
    e("s_add_u32 s34, s34, s35")
    e("s_mul_i32 s36, s33, 15360")
    e("v_lshrrev_b32 v13, 2, v11")
    e("v_lshl_add_u32 v13, v12, 3, v13")
    e("v_mul_u32_u24 v13, 160, v13")
    e("v_and_b32 v14, 3, v11")
    e("v_lshl_add_u32 v13, v14, 3, v13")
    e(f"v_add_u32 v{vRW}, s36, v13")
    for i in range(4):
        e(f"s_mov_b32 s{40+i}, {49152*i}")
    ACC = 128
    for i in range(80):
        e(f"v_mov_b32 v{ACC+i}, 0")
    FA = 32
    FW = 80
    def loads(s):
        st = s % 3
        for i in range(4):
            e(f"buffer_load_dwordx4 v[{FA+16*st+4*i}:{FA+16*st+4*i+3}], v{vOA}, s[{sA}:{sA+3}], s{40+i} offen offset:{64*s}")
        e(f"s_add_u32 s37, s34, {32*s*1280}")
        for j in range(5):
            e(f"s_add_u32 m0, s36, {st*5120 + 1024*j}")
            e("s_nop 0")
            e(f"buffer_load_dwordx4 v{vOW+j}, s[{sW}:{sW+3}], s37 offen lds")
    loads(0); loads(1)
    for s in range(12):
        st = s % 3
        e(f"s_waitcnt vmcnt({9 if s < 11 else 0})")
        for t in range(5):
            for h2 in range(2):
                e(f"ds_read_b64_tr_b16 v[{FW+4*t+2*h2}:{FW+4*t+2*h2+1}], v{vRW} offset:{st*5120 + 32*t + 640*h2}")
        if s + 2 < 12: loads(s + 2)
        e("s_waitcnt lgkmcnt(0)")
        for i in range(4):
            for t in range(5):
                d = ACC + (i*5+t)*4
                e(f"v_mfma_f32_16x16x32_bf16 v[{d}:{d+3}], v[{FW+4*t}:{FW+4*t+3}], v[{FA+16*st+4*i}:{FA+16*st+4*i+3}], v[{d}:{d+3}]")
    RB = 61440
    e("s_mul_i32 s37, s33, 20480")
    e("v_lshlrev_b32 v13, 4, v2")
    e(f"v_add_u32 v13, {RB}, v13")
    e("v_add_u32 v14, s37, v13")
    e("s_mul_i32 s37, s33, 5120")
    e("v_add_u32 v15, s37, v13")
    e("v_add_u32 v17, 40960, v15")
    e("s_lshl_b32 s37, s30, 6")
    e("s_lshl_b32 s38, s33, 4")
    e("s_add_u32 s37, s37, s38")
    e("v_add_u32 v16, s37, v11")
    e("v_mul_u32_u24 v16, 1280, v16")
    e("v_lshl_add_u32 v16, v12, 3, v16")
    e("s_mul_i32 s37, s31, 160")
    e("v_add_u32 v16, s37, v16")
    HB = 112
    for t in range(5):
        e(f"buffer_load_dwordx2 v[{HB+2*t}:{HB+2*t+1}], v16, s[{sH}:{sH+3}], 0 offen offset:{32*t}")
    e("s_nop 4")
    for tile in range(20):
        e(f"ds_write_b128 v14, v[{ACC+4*tile}:{ACC+4*tile+3}] offset:{tile*1024}")
    e("s_waitcnt lgkmcnt(0)")
    e("s_barrier")
    R = 32
    for t in range(5):
        for w in range(4):
            e(f"ds_read_b128 v[{R+(t*4+w)*4}:{R+(t*4+w)*4+3}], v{15 if w < 2 else 17} offset:{t*1024 + (w&1)*20480}")
    e("s_mov_b32 s44, 0xffff0000")
    e("s_waitcnt vmcnt(0) lgkmcnt(0)")
    for t in range(5):
        b = R + t*16
        for r in range(4):
            e(f"v_add_f32 v{b+r}, v{b+r}, v{b+4+r}")
            e(f"v_add_f32 v{b+8+r}, v{b+8+r}, v{b+12+r}")
        for r in range(4):
            e(f"v_add_f32 v{b+r}, v{b+r}, v{b+8+r}")
        e(f"v_cvt_pk_bf16_f32 v{b+4}, v{b}, v{b+1}")
        e(f"v_cvt_pk_bf16_f32 v{b+5}, v{b+2}, v{b+3}")
        for r in range(4):
            src = b + 4 + (r >> 1)
            if r & 1: e(f"v_and_b32 v{b+8+r}, s44, v{src}")
            else: e(f"v_lshlrev_b32 v{b+8+r}, 16, v{src}")
            src = HB + 2*t + (r >> 1)
            if r & 1: e(f"v_and_b32 v{b+12+r}, s44, v{src}")
            else: e(f"v_lshlrev_b32 v{b+12+r}, 16, v{src}")
        for r in range(4):
            e(f"v_add_f32 v{b+8+r}, v{b+8+r}, v{b+12+r}")
        e(f"v_cvt_pk_bf16_f32 v{b}, v{b+8}, v{b+9}")
        e(f"v_cvt_pk_bf16_f32 v{b+1}, v{b+10}, v{b+11}")
        e(f"buffer_store_dwordx2 v[{b}:{b+1}], v16, s[{sO}:{sO+3}], 0 offen offset:{32*t}")
    e("K5_END:")
    e("s_endpgm")
    return name, 208
```

```python
import numpy as np
def f16bits(a):
    return np.asarray(a, dtype=np.float64).astype(np.float16).view(np.uint16)

def g64_table():
    out = np.zeros((3, 4, 2, 64, 8), dtype=np.float64)
    for mt4 in range(4):
        for t in range(2):
            for l in range(64):
                m = l & 15; q4 = l >> 4
                bp = 16 * mt4 + m
                for j in range(8):
                    b = 32 * t + 16 * (j >> 2) + 4 * q4 + (j & 3)
                    ang = 2 * np.pi * ((b * bp) % 64) / 64
                    c = np.cos(ang) / 8; s = np.sin(ang) / 8
                    if (b*bp) % 16 == 0:
                        c = np.round(c*8)/8; s = np.round(s*8)/8
                    out[0, mt4, t, l, j] = c
                    out[1, mt4, t, l, j] = -s
                    out[2, mt4, t, l, j] = s
    return f16bits(out)

NSTEP = [6, 5, 5, 5]
def row_tables():
    tiles = []
    sc = 1 / np.sqrt(640.0)
    for j in range(11):
        parts = []
        for g in range(4):
            a = np.zeros((NSTEP[g], 64, 8))
            for t in range(NSTEP[g]):
                for l in range(64):
                    p = 16 * j + (l & 15); q4 = l >> 4
                    if p > 160: continue
                    for jj in range(8):
                        q = 32 * t + 8 * q4 + jj
                        if g == 0:
                            if q > 160: continue
                            n = 2 * q
                        elif g == 2:
                            if q > 159: continue
                            n = 2 * q
                        else:
                            n = 2 * q + 1
                        r = (p * n) % 640
                        ang = 2 * np.pi * r / 640
                        v = np.cos(ang) if g < 2 else np.sin(ang)
                        if r % 160 == 0: v = np.round(v)
                        a[t, l, jj] = v * sc
            parts.append(a.reshape(-1))
        tiles.append(np.concatenate(parts))
    return f16bits(np.stack(tiles))

def emit_data(label, arr16):
    b = np.ascontiguousarray(arr16).view(np.uint64).reshape(-1)
    out = [f".p2align 8\n{label}:"]
    i = 0; n = len(b)
    line = []
    while i < n:
        if b[i] == 0:
            j = i
            while j < n and b[j] == 0: j += 1
            if j - i >= 4:
                if line: out.append(".quad " + ",".join(line)); line = []
                out.append(f".zero {8*(j-i)}")
                i = j; continue
        line.append(f"0x{int(b[i]):x}")
        if len(line) == 16:
            out.append(".quad " + ",".join(line)); line = []
        i += 1
    if line: out.append(".quad " + ",".join(line))
    return "\n".join(out) + "\n"
```

```python
from fw import *
from k1 import *
from k2 import *
from k3 import *
from k45 import *
from tables import *
import sys
e = Asm()
ref = open("sequential_preLN__spectral_gfnet__geglu_ffn__prompt.s.ref").read()
head = "".join(l + "\n" for l in ref.split("\n") if l.startswith(";") and "@launch" not in l)
hdr = head + f"""; @launch kernel=k1_kernel grid=(256,1,1) block=(512,1,1) lds={32*PITCH}
; @launch kernel=k2_kernel grid=(168,1,1) block=(256,1,1) lds=0
; @launch kernel=k3_kernel grid=(64,1,1) block=(512,1,1) lds={K3_LDS}
; @launch kernel=k4_kernel grid=(256,1,1) block=(256,1,1) lds=122880
; @launch kernel=k5_kernel grid=(256,1,1) block=(256,1,1) lds=143360
.amdgcn_target "amdgcn-amd-amdhsa--gfx950"
.text
"""
ks = [gen_k1(e), gen_k2(e), gen_k3(e), gen_k4(e), gen_k5(e)]
txt = hdr + e.text() + '.section .rodata,"a"\n' + "".join(kd(n, v) for n, v in ks) + emit_data("g64tab", g64_table()) + emit_data("rowtab", row_tables())
out = sys.argv[1] if len(sys.argv) > 1 else "sequential_preLN__spectral_gfnet__geglu_ffn__prompt.s"
open(out, "w").write(txt)
print(len(txt))
```

```python
class Asm:
    def __init__(self):
        self.lines = []
    def __call__(self, s=""):
        for ln in s.split("\n"):
            self.lines.append("    " + ln.strip() if ln.strip() and not ln.strip().endswith(":") else ln.strip())
    def text(self):
        return "\n".join(self.lines) + "\n"

def vr(a, n=1):
    return f"v{a}" if n == 1 else f"v[{a}:{a+n-1}]"
def sr(a, n=1):
    return f"s{a}" if n == 1 else f"s[{a}:{a+n-1}]"

def kernel_head(e, name):
    e(f".globl {name}")
    e(".p2align 8")
    e(f".type {name},@function")
    e(f"{name}:")

def kd(name, vgpr, sgpr=102):
    acc = (vgpr + 3) // 4 * 4
    return f""".p2align 6
.amdhsa_kernel {name}
  .amdhsa_next_free_vgpr {vgpr}
  .amdhsa_next_free_sgpr {sgpr}
  .amdhsa_accum_offset {acc}
  .amdhsa_group_segment_fixed_size 0
  .amdhsa_kernarg_size 80
  .amdhsa_user_sgpr_count 2
  .amdhsa_user_sgpr_kernarg_segment_ptr 1
  .amdhsa_system_sgpr_workgroup_id_x 1
.end_amdhsa_kernel
"""

def srd(e, d, base, off, nbytes):
    if off:
        e(f"s_add_u32 s{d}, s{base}, {off}")
        e(f"s_addc_u32 s{d+1}, s{base+1}, 0")
    else:
        e(f"s_mov_b32 s{d}, s{base}")
        e(f"s_mov_b32 s{d+1}, s{base+1}")
    e(f"s_mov_b32 s{d+2}, {nbytes}")
    e(f"s_mov_b32 s{d+3}, 0x00020000")

WS_U = 0x000000; U_STRIDE = 1408; U_BYTES = 2048 * U_STRIDE
WS_V = 0x300000
WS_H = 0x600000; H_BYTES = 2048 * 1280
WS_LN2 = 0x900000
WS_A = 0xC00000; A_BYTES = 2048 * 3072
WS_WMAX = 0x1200000

class Stamps:
    def __init__(self, e, base=60, on=True):
        self.e, self.base, self.n, self.on = e, base, 0, on
    def __call__(self, real=False):
        if not self.on: return
        b = self.base + 2 * self.n
        self.e(f"s_memrealtime s[{b}:{b+1}]" if real else f"s_memtime s[{b}:{b+1}]")
        self.n += 1
    def dump(self, lbl, wg=0, shift=6):
        if not self.on: return
        e = self.e
        e("s_waitcnt vmcnt(0) lgkmcnt(0)")
        e(f"s_cmp_lg_u32 s2, {wg}")
        e(f"s_cbranch_scc1 {lbl}_nodump")
        e("s_load_dwordx2 s[96:97], s[0:1], 64")
        e("s_waitcnt lgkmcnt(0)")
        e("s_mov_b32 s98, 256")
        e("s_mov_b32 s99, 0x00020000")
        e("v_lshrrev_b32 v1, 6, v0")
        e(f"v_lshlrev_b32 v1, {shift}, v1")
        e("v_and_b32 v2, 63, v0")
        e("v_cmp_eq_u32 vcc, 0, v2")
        e("s_and_saveexec_b64 s[94:95], vcc")
        for i in range(self.n):
            e(f"v_mov_b32 v3, s{self.base+2*i}")
            e(f"buffer_store_dword v3, v1, s[96:99], 0 offen offset:{4*i}")
        e("s_waitcnt vmcnt(0)")
        e("s_mov_b64 exec, s[94:95]")
        e(f"{lbl}_nodump:")

WS_DIAG = 0x1400000
def wg_timeline(e, lbl, sstart):
    e("s_waitcnt vmcnt(0) lgkmcnt(0)")
    e("s_memrealtime s[92:93]")
    e("s_load_dwordx2 s[96:97], s[0:1], 72")
    e("s_waitcnt lgkmcnt(0)")
    e(f"s_add_u32 s96, s96, {WS_DIAG}")
    e("s_addc_u32 s97, s97, 0")
    e("s_mov_b32 s98, 65536")
    e("s_mov_b32 s99, 0x00020000")
    e("v_cmp_eq_u32 vcc, 0, v0")
    e("s_and_saveexec_b64 s[94:95], vcc")
    e("s_lshl_b32 s91, s2, 3")
    e("v_mov_b32 v1, s91")
    e(f"v_mov_b32 v2, s{sstart}")
    e("v_mov_b32 v3, s92")
    e("buffer_store_dwordx2 v[2:3], v1, s[96:99], 0 offen")
    e("s_waitcnt vmcnt(0)")
    e("s_mov_b64 exec, s[94:95]")
WS_PG = 0x1600000; PG_BYTES = 2*640*1536*2
WS_PD = 0x1A00000; PD_BYTES = 1536*640*2
WS_WP = 0x1C00000; WP_BYTES = 672*4096
WS_SC = WS_WMAX + 4096
WS_UP = 0x2000000; UP_STRIDE = 0x300000
```

```python
from fw import *
from k2 import table_srd
from tables import NSTEP
import struct
def f2u(x): return struct.unpack("<I", struct.pack("<f", x))[0]
PITCH = 1552

def wave_sum(e, regs, tmp):
    n = len(regs)
    for sh in (8, 4, 2, 1):
        if n < 3: e(f"s_nop {2-n}")
        for r in regs:
            e(f"v_add_f32_dpp v{r}, v{r}, v{r} row_ror:{sh} row_mask:0xf bank_mask:0xf")
    for op in ("v_permlane16_swap_b32", "v_permlane32_swap_b32"):
        for i, r in enumerate(regs):
            e(f"v_mov_b32 v{tmp+i}, v{r}")
        e("s_nop 1")
        for i, r in enumerate(regs):
            e(f"{op} v{tmp+i}, v{r}")
        e("s_nop 0") if n < 2 else None
        for i, r in enumerate(regs):
            e(f"v_add_f32 v{r}, v{r}, v{tmp+i}")

def gmat(e, G, T, sb, conj_for_k3):
    sc = 1 / 32 ** 0.5
    e(f"s_mov_b32 s80, {f2u(1/2048):#x}")
    e(f"s_mov_b32 s81, {f2u(sc):#x}")
    for mo in range(2):
        for mi in range(2):
            for r in range(4):
                t = T + 4 * r
                e(f"v_add_u32 v{t}, {16*mo}, v4")
                e(f"v_lshl_add_u32 v{t+1}, v5, 2, {16*mi+r}")
                if not conj_for_k3:
                    e(f"v_lshl_add_u32 v{t+1}, v{t+1}, 6, s{sb}")
                    e(f"v_mul_u32_u24 v{t}, v{t}, v{t+1}")
                else:
                    e(f"v_lshl_add_u32 v{t}, v{t}, 6, s{sb}")
                    e(f"v_mul_u32_u24 v{t}, v{t}, v{t+1}")
                e(f"v_and_b32 v{t}, 2047, v{t}")
                e(f"v_cvt_f32_u32 v{t}, v{t}")
                e(f"v_mul_f32 v{t}, s80, v{t}")
                e(f"v_cos_f32 v{t+1}, v{t}")
                e(f"v_sin_f32 v{t+2}, v{t}")
            for r in range(4):
                t = T + 4 * r
                e(f"v_mul_f32 v{t+1}, s81, v{t+1}")
                e(f"v_mul_f32 v{t+2}, s81, v{t+2}")
            for r in range(4):
                t = T + 4 * r
                re = G + ((mo*2+0)*2+mi)*4 + r
                im = G + ((mo*2+1)*2+mi)*4 + r
                if not conj_for_k3:
                    e(f"v_cvt_pk_f16_f32 v{re}, v{t+1}, v{t+2}")
                    e(f"v_cvt_pk_f16_f32 v{im}, -v{t+2}, v{t+1}")
                else:
                    e(f"v_cvt_pk_f16_f32 v{re}, v{t+1}, -v{t+2}")
                    e(f"v_cvt_pk_f16_f32 v{im}, v{t+2}, v{t+1}")

def ln_rows(e, X, nrow, nel, T, S):
    SUM = T; TMP = T + nrow; MB = T + 2*nrow; SS = T + 3*nrow; DM = T + 4*nrow; RI = T + 5*nrow
    for r in range(nrow):
        x = X + r*nel
        e(f"v_add_f32 v{SUM+r}, v{x}, v{x+1}")
        for i in range(2, nel):
            e(f"v_add_f32 v{SUM+r}, v{SUM+r}, v{x+i}")
    wave_sum(e, [SUM+r for r in range(nrow)], TMP)
    e(f"s_mov_b32 s82, {f2u(1/640):#x}")
    for r in range(nrow):
        e(f"v_mul_f32 v{SUM+r}, s82, v{SUM+r}")
    for r in range(nrow):
        e(f"v_cvt_pk_bf16_f32 v{MB+r}, v{SUM+r}, v{SUM+r}")
    for r in range(nrow):
        e(f"v_and_b32 v{MB+r}, s{S}, v{MB+r}")
    for r in range(nrow):
        e(f"v_sub_f32 v{DM+r}, v{SUM+r}, v{MB+r}")
    for r in range(nrow):
        x = X + r*nel
        for i in range(nel):
            e(f"v_sub_f32 v{x+i}, v{x+i}, v{MB+r}")
        e(f"v_mul_f32 v{SS+r}, v{x}, v{x}")
        for i in range(1, nel):
            e(f"v_fmac_f32 v{SS+r}, v{x+i}, v{x+i}")
    wave_sum(e, [SS+r for r in range(nrow)], TMP)
    e(f"s_mov_b32 s83, {f2u(1e-5):#x}")
    for r in range(nrow):
        e(f"v_mul_f32 v{SS+r}, s82, v{SS+r}")
    for r in range(nrow):
        e(f"v_fma_f32 v{SS+r}, -v{DM+r}, v{DM+r}, v{SS+r}")
    for r in range(nrow):
        e(f"v_max_f32 v{SS+r}, 0, v{SS+r}")
    for r in range(nrow):
        e(f"v_cvt_pk_bf16_f32 v{SS+r}, v{SS+r}, v{SS+r}")
    for r in range(nrow):
        e(f"v_and_b32 v{SS+r}, s{S}, v{SS+r}")
    for r in range(nrow):
        e(f"v_add_f32 v{SS+r}, s83, v{SS+r}")
    for r in range(nrow):
        e(f"v_cvt_pk_bf16_f32 v{SS+r}, v{SS+r}, v{SS+r}")
    for r in range(nrow):
        e(f"v_and_b32 v{SS+r}, s{S}, v{SS+r}")
    for r in range(nrow):
        e(f"v_sqrt_f32 v{SS+r}, v{SS+r}")
    e("s_nop 0")
    for r in range(nrow):
        e(f"v_cvt_pk_bf16_f32 v{SS+r}, v{SS+r}, v{SS+r}")
    for r in range(nrow):
        e(f"v_and_b32 v{SS+r}, s{S}, v{SS+r}")
    for r in range(nrow):
        e(f"v_rcp_f32 v{RI+r}, v{SS+r}")
    e("s_nop 0")
    for r in range(nrow):
        x = X + r*nel
        for i in range(0, nel, 2):
            e(f"v_cvt_pk_bf16_f32 v{x+i}, v{x+i}, v{x+i+1}")
        for i in range(0, nel, 2):
            e(f"v_and_b32 v{x+i+1}, s{S}, v{x+i}")
            e(f"v_lshlrev_b32 v{x+i}, 16, v{x+i}")
        for i in range(nel):
            e(f"v_mul_f32 v{x+i}, v{x+i}, v{RI+r}")

def gen_k1(e, name="k1_kernel", stamps=False):
    st = Stamps(e, base=60, on=stamps)
    kernel_head(e, name)
    sX, sU, sT = 12, 16, 20
    e("s_cmp_ge_u32 s2, 256")
    e(f"s_cbranch_scc1 {name}_END")
    st(); st(True)
    e("s_load_dwordx2 s[4:5], s[0:1], 0")
    e("s_load_dwordx2 s[8:9], s[0:1], 72")
    table_srd(e, sT, "rowtab", 11*21504)
    e("v_lshrrev_b32 v1, 6, v0")
    e("v_and_b32 v2, 63, v0")
    e("s_and_b32 s30, s2, 63")
    e("s_lshr_b32 s31, s2, 6")
    e("v_readfirstlane_b32 s33, v1")
    e("v_and_b32 v4, 15, v2")
    e("v_lshrrev_b32 v5, 4, v2")
    e("s_mul_i32 s34, s31, 3")
    e("s_add_u32 s34, s34, s33")
    e("s_cmp_lt_u32 s33, 3")
    e("s_cselect_b32 s35, 1, 0")
    e("s_cmp_lt_u32 s34, 11")
    e("s_cselect_b32 s35, s35, 0")
    e("v_lshlrev_b32 v6, 1, v2")
    e("v_sub_u32 v7, 768, v6")
    e("v_sub_u32 v8, 1280, v6")
    e("v_cmp_eq_u32 vcc, 0, v2")
    e("v_mov_b32 v9, 640")
    e("v_cndmask_b32 v8, v8, v9, vcc")
    e("s_waitcnt lgkmcnt(0)")
    srd(e, sX, 4, 0, H_BYTES)
    srd(e, sU, 8, WS_U, U_BYTES)
    XR = 16
    for r in range(4):
        e(f"s_lshl_b32 s36, s33, 8")
        e(f"s_add_u32 s36, s36, s30")
        e(f"s_add_u32 s36, s36, {64*r}")
        e(f"s_mul_i32 s36, s36, 1280")
        for q in range(5):
            e(f"buffer_load_ushort v{XR+10*r+2*q}, v6, s[{sX}:{sX+3}], s36 offen offset:{128*q}")
            if q == 0:
                e(f"buffer_load_ushort v{XR+10*r+1}, v8, s[{sX}:{sX+3}], s36 offen")
            else:
                e(f"buffer_load_ushort v{XR+10*r+2*q+1}, v7, s[{sX}:{sX+3}], s36 offen offset:{128*(4-q)}")
    st()
    TB = 128
    G = 64
    e("s_cmp_eq_u32 s35, 0")
    e(f"s_cbranch_scc1 {name}_notask0")
    e("v_lshlrev_b32 v3, 4, v2")
    e("s_mul_i32 s36, s34, 21504")
    for i in range(21):
        if i % 4 == 0 and i:
            e(f"s_add_u32 s36, s36, 4096")
        e(f"buffer_load_dwordx4 v[{TB+4*i}:{TB+4*i+3}], v3, s[{sT}:{sT+3}], s36 offen offset:{1024*(i%4)}")
    gmat(e, G, 96, 30, False)
    e("s_waitcnt vmcnt(21)")
    e(f"s_branch {name}_ln")
    e(f"{name}_notask0:")
    e("s_waitcnt vmcnt(0)")
    e(f"{name}_ln:")
    st()
    e("s_mov_b32 s40, 0xffff0000")
    for i in range(40):
        e(f"v_lshlrev_b32 v{XR+i}, 16, v{XR+i}")
    ln_rows(e, XR, 4, 10, 96, 40)
    e("v_and_b32 v10, 1, v2")
    e("v_mul_u32_u24 v10, 384, v10")
    e("v_and_b32 v11, 62, v2")
    e("v_add_u32 v10, v10, v11")
    e(f"s_mul_i32 s36, s33, {4*PITCH}")
    e("v_add_u32 v10, s36, v10")
    e("v_lshlrev_b32 v11, 1, v2")
    e("v_add_u32 v11, s36, v11")
    e("v_cmp_eq_u32 vcc, 0, v2")
    for r in range(4):
        x = XR + 10*r
        for q in range(5):
            e(f"v_cvt_pk_bf16_f32 v{x+2*q}, v{x+2*q}, v{x+2*q+1}")
        for q in range(5):
            e(f"v_and_b32 v{x+2*q+1}, s40, v{x+2*q}")
            e(f"v_lshlrev_b32 v{x+2*q}, 16, v{x+2*q}")
        e(f"v_cndmask_b32 v12, 0, v{x+1}, vcc")
        e(f"v_cndmask_b32 v13, v{x}, 0, vcc")
        e(f"v_cndmask_b32 v{x+1}, v{x+1}, 0, vcc")
        e(f"v_cvt_f16_f32 v12, v12")
        for q in range(5):
            lo = x+2*q; hi = x+2*q+1
            e(f"v_add_f32 v14, v{lo}, v{hi}")
            e(f"v_sub_f32 v15, v{13 if q == 0 else lo}, v{hi}")
            e(f"v_cvt_pk_f16_f32 v{lo}, v14, v15")
            e(f"ds_write_b16 v10, v{lo} offset:{r*PITCH + 64*q}")
            e(f"ds_write_b16_d16_hi v10, v{lo} offset:{r*PITCH + 64*q + 768}")
        e("s_mov_b64 exec, 0xffffffff")
        e(f"ds_write_b16 v11, v12 offset:{r*PITCH + 320}")
        e("s_mov_b64 exec, -1")
    st()
    e("s_waitcnt lgkmcnt(0)")
    e("s_barrier")
    st()
    e("s_cmp_eq_u32 s35, 0")
    e(f"s_cbranch_scc1 {name}_END")
    e(f"v_mul_u32_u24 v10, {PITCH}, v4")
    e("v_lshl_add_u32 v10, v5, 4, v10")
    D = 16
    AF = 96
    seq = [(g, t, mi) for g in range(4) for t in range(NSTEP[g]) for mi in range(2)]
    tb_index = {}
    k = 0
    for g in range(4):
        for t in range(NSTEP[g]):
            tb_index[(g, t)] = k; k += 1
    NB = 8
    def rd(i):
        g, t, mi = seq[i]
        a = AF + 4*(i % NB)
        e(f"ds_read_b128 v[{a}:{a+3}], v10 offset:{mi*16*PITCH + g*384 + 64*t}")
    for i in range(NB): rd(i)
    e("s_waitcnt vmcnt(0)")
    for i, (g, t, mi) in enumerate(seq):
        rem = min(NB - 1, len(seq) - 1 - i)
        e(f"s_waitcnt lgkmcnt({rem})")
        a = AF + 4*(i % NB); d = D + (g*2+mi)*4; tb = TB + 4*tb_index[(g, t)]
        e(f"v_mfma_f32_16x16x32_f16 v[{d}:{d+3}], v[{a}:{a+3}], v[{tb}:{tb+3}], {'0' if t == 0 else f'v[{d}:{d+3}]'}")
        if i + NB < len(seq): rd(i + NB)
    e("s_nop 7")
    st()
    BK, BM = 48, 56
    for mi in range(2):
        for r in range(4):
            ce, co, se, so = (D + (g*2+mi)*4 + r for g in range(4))
            e(f"v_add_f32 v96, v{ce}, v{co}")
            e(f"v_sub_f32 v97, v{ce}, v{co}")
            e(f"v_add_f32 v98, v{se}, v{so}")
            e(f"v_sub_f32 v99, v{se}, v{so}")
            e(f"v_cvt_pk_f16_f32 v{BK+4*mi+r}, v96, -v98")
            e(f"v_cvt_pk_f16_f32 v{BM+4*mi+r}, v97, v99")
    e("s_nop 1")
    O = 128
    for col, B in enumerate((BK, BM)):
        for mo in range(2):
            for ri in range(2):
                d = O + ((col*2+mo)*2+ri)*4
                for mi in range(2):
                    g = G + ((mo*2+ri)*2+mi)*4
                    e(f"v_mfma_f32_16x16x32_f16 v[{d}:{d+3}], v[{g}:{g+3}], v[{B+4*mi}:{B+4*mi+3}], {'0' if mi == 0 else f'v[{d}:{d+3}]'}")
    e("s_lshl_b32 s36, s34, 4")
    e("v_add_u32 v11, s36, v4")
    e("v_lshl_add_u32 v12, v5, 8, s30")
    e("v_mul_u32_u24 v12, 1408, v12")
    e("v_lshl_add_u32 v13, v11, 2, v12")
    e("v_sub_u32 v14, 320, v11")
    e("v_lshl_add_u32 v14, v14, 2, v12")
    e("v_cmp_lt_u32 vcc, 160, v11")
    e("v_mov_b32 v15, 0x80000000")
    e("v_cndmask_b32 v13, v13, v15, vcc")
    e("v_cndmask_b32 v14, v14, v15, vcc")
    e("s_nop 4")
    for col in range(2):
        for mo in range(2):
            for r in range(4):
                dr = O + ((col*2+mo)*2+0)*4 + r; di = O + ((col*2+mo)*2+1)*4 + r
                e(f"s_mov_b32 s36, {(16*mo+r)*64*1408}")
                e(f"v_cvt_pk_f16_f32 v{dr}, v{dr}, v{di}")
                e(f"buffer_store_dword v{dr}, v{13+col}, s[{sU}:{sU+3}], s36 offen")
    st()
    e("s_waitcnt vmcnt(0)")
    st(); st(True)
    st.dump(name)
    e(f"{name}_END:")
    e("s_endpgm")
    return name, 212
```

```python
from fw import *
from k2 import table_srd
from k1 import gmat, f2u, PITCH
from tables import NSTEP
from k2v2 import gen_wprep

def row16_sum(e, r):
    for sh in (8, 4, 2, 1):
        e("s_nop 1")
        e(f"v_add_f32_dpp v{r}, v{r}, v{r} row_ror:{sh} row_mask:0xf bank_mask:0xf")

def ln16(e0, X, n, T, S, hook=None):
    cnt = [0]
    def e(x):
        e0(x)
        cnt[0] += 1
        if hook and cnt[0] % 16 == 0: hook()
    A, B, C, D4 = T, T+1, T+2, T+3
    for k in range(4):
        e(f"v_add_f32 v{T+k}, v{X+k}, v{X+4+k}")
    for i in range(8, n, 4):
        for k in range(4):
            e(f"v_add_f32 v{T+k}, v{T+k}, v{X+i+k}")
    e(f"v_add_f32 v{A}, v{A}, v{B}")
    e(f"v_add_f32 v{C}, v{C}, v{D4}")
    e(f"v_add_f32 v{A}, v{A}, v{C}")
    row16_sum(e, A)
    e(f"s_mov_b32 s82, {f2u(1/640):#x}")
    e(f"s_mov_b32 s83, {f2u(1e-5):#x}")
    MB, DM = T+4, T+5
    e(f"v_mul_f32 v{A}, s82, v{A}")
    e(f"v_cvt_pk_bf16_f32 v{MB}, v{A}, v{A}")
    e(f"v_and_b32 v{MB}, v{S}, v{MB}")
    e(f"v_sub_f32 v{DM}, v{A}, v{MB}")
    for i in range(n):
        e(f"v_sub_f32 v{X+i}, v{X+i}, v{MB}")
    for k in range(4):
        e(f"v_mul_f32 v{T+k}, v{X+k}, v{X+k}")
    for i in range(4, n, 4):
        for k in range(4):
            e(f"v_fmac_f32 v{T+k}, v{X+i+k}, v{X+i+k}")
    e(f"v_add_f32 v{A}, v{A}, v{B}")
    e(f"v_add_f32 v{C}, v{C}, v{D4}")
    e(f"v_add_f32 v{A}, v{A}, v{C}")
    row16_sum(e, A)
    e(f"v_mul_f32 v{A}, s82, v{A}")
    e(f"v_fma_f32 v{A}, -v{DM}, v{DM}, v{A}")
    e(f"v_max_f32 v{A}, 0, v{A}")
    e(f"v_cvt_pk_bf16_f32 v{A}, v{A}, v{A}")
    e(f"v_and_b32 v{A}, v{S}, v{A}")
    e(f"v_add_f32 v{A}, s83, v{A}")
    e(f"v_cvt_pk_bf16_f32 v{A}, v{A}, v{A}")
    e(f"v_and_b32 v{A}, v{S}, v{A}")
    e(f"v_sqrt_f32 v{A}, v{A}")
    for i in range(0, n, 2):
        e(f"v_cvt_pk_bf16_f32 v{X+i}, v{X+i}, v{X+i+1}")
    e(f"v_cvt_pk_bf16_f32 v{A}, v{A}, v{A}")
    e(f"v_and_b32 v{A}, v{S}, v{A}")
    e(f"v_rcp_f32 v{A}, v{A}")
    for i in range(0, n, 2):
        e(f"v_and_b32 v{X+i+1}, v{S}, v{X+i}")
        e(f"v_lshlrev_b32 v{X+i}, 16, v{X+i}")
    for i in range(n):
        e(f"v_mul_f32 v{X+i}, v{X+i}, v{A}")
    for i in range(0, n, 2):
        e(f"v_cvt_pk_bf16_f32 v{X+i}, v{X+i}, v{X+i+1}")
    for i in range(0, n, 2):
        e(f"v_and_b32 v{X+i+1}, v{S}, v{X+i}")
        e(f"v_lshlrev_b32 v{X+i}, 16, v{X+i}")

def gen_k1(e, name="k1_kernel", stamps=False, side=True):
    st = Stamps(e, base=60, on=stamps)
    kernel_head(e, name)
    sX, sU, sT = 12, 16, 20
    e(f"s_cmp_ge_u32 s2, {212 if side else 128}")
    e(f"s_cbranch_scc1 {name}_END")
    if side:
        e("s_cmp_ge_u32 s2, 128")
        e(f"s_cbranch_scc1 {name}_RP")
    st(); st(True)
    e("s_load_dwordx2 s[4:5], s[0:1], 0")
    e("s_load_dwordx2 s[8:9], s[0:1], 72")
    table_srd(e, sT, "rowtab", 11*21504)
    e("v_lshrrev_b32 v1, 6, v0")
    e("v_and_b32 v2, 63, v0")
    e("s_and_b32 s30, s2, 63")
    e("s_lshr_b32 s31, s2, 6")
    e("v_readfirstlane_b32 s33, v1")
    e("v_and_b32 v4, 15, v2")
    e("v_lshrrev_b32 v5, 4, v2")
    e("s_mul_i32 s34, s31, 6")
    e("s_add_u32 s34, s34, s33")
    e("s_cmp_lt_u32 s33, 6")
    e("s_cselect_b32 s35, 1, 0")
    e("s_cmp_lt_u32 s34, 11")
    e("s_cselect_b32 s35, s35, 0")
    e("s_lshl_b32 s36, s33, 8")
    e("s_add_u32 s36, s36, s30")
    e("v_lshl_add_u32 v6, v5, 6, s36")
    e("v_mul_u32_u24 v6, 1280, v6")
    e("v_lshlrev_b32 v7, 3, v4")
    e("v_sub_u32 v8, v6, v7")
    e("v_add_u32 v8, 760, v8")
    e("v_add_u32 v6, v6, v7")
    e("s_waitcnt lgkmcnt(0)")
    srd(e, sX, 4, 0, H_BYTES)
    RAW = 96
    for q in range(5):
        e(f"buffer_load_dwordx2 v[{RAW+2*q}:{RAW+2*q+1}], v6, s[{sX}:{sX+3}], 0 offen offset:{128*q}")
        e(f"buffer_load_dwordx2 v[{RAW+10+2*q}:{RAW+11+2*q}], v8, s[{sX}:{sX+3}], 0 offen offset:{128*(4-q)}")
    srd(e, sU, 8, WS_U, U_BYTES)
    st()
    TB = 128; G = 64
    e("v_lshlrev_b32 v3, 4, v2")
    e("s_mul_i32 s36, s34, 21504")
    e("s_cmp_eq_u32 s35, 0")
    e("s_cselect_b32 s36, 0x80000000, s36")
    e(f"s_cbranch_scc1 {name}_ln")
    gmat(e, G, 16, 30, False)
    e(f"{name}_ln:")
    for i in range(1, 6): e(f"s_add_u32 s{50+i}, s36, {4096*i}")
    e("s_mov_b32 s50, s36")
    tl = [0]
    def hook():
        i = tl[0]
        if i < 21:
            e(f"buffer_load_dwordx4 v[{TB+4*i}:{TB+4*i+3}], v3, s[{sT}:{sT+3}], s{50+i//4} offen offset:{1024*(i%4)}")
            tl[0] += 1
    e("v_mov_b32 v9, 0xffff0000")
    e("s_waitcnt vmcnt(0)")
    st()
    X = 16
    for k in range(20):
        e(f"v_lshlrev_b32 v{X+2*k}, 16, v{RAW+k}")
        e(f"v_and_b32 v{X+2*k+1}, v9, v{RAW+k}")
    ln16(e, X, 40, 56, 9, hook)
    while tl[0] < 21: hook()
    R = 96
    for q in range(5):
        e(f"v_mov_b32_dpp v{R+q}, v{X+20+4*q} row_ror:1 row_mask:0xf bank_mask:0xf")
    e("s_lshl_b32 s36, s33, 2")
    e("v_add_u32 v10, s36, v5")
    e(f"v_mul_u32_u24 v10, {PITCH}, v10")
    e("v_lshl_add_u32 v10, v4, 2, v10")
    e(f"v_mov_b32 v{R+6}, 0")
    e(f"v_mov_b32 v{R+7}, v{X}")
    e("s_mov_b32 s42, 0x00010001")
    e("s_mov_b32 s43, 0x00010001")
    e("s_mov_b64 exec, s[42:43]")
    e(f"v_mov_b32 v{R+6}, v{R+4}")
    for q in range(4, 0, -1):
        e(f"v_mov_b32 v{R+q}, v{R+q-1}")
    e(f"v_mov_b32 v{R}, 0")
    e(f"v_mov_b32 v{R+7}, 0")
    e("s_mov_b64 exec, -1")
    e(f"v_cvt_pk_f16_f32 v{R+6}, v{R+6}, 0")
    e(f"ds_write_b32 v10, v{R+6} offset:320")
    W = 104
    for q in range(5):
        lo = [X+4*q+j for j in range(4)]
        mi = [R+q, X+20+4*q+3, X+20+4*q+2, X+20+4*q+1]
        for j in range(4):
            e(f"v_add_f32 v{W+j}, v{lo[j]}, v{mi[j]}")
            e(f"v_sub_f32 v{W+4+j}, v{R+7 if (q == 0 and j == 0) else lo[j]}, v{mi[j]}")
        e(f"v_cvt_pk_f16_f32 v{W+8}, v{W}, v{W+2}")
        e(f"v_cvt_pk_f16_f32 v{W+9}, v{W+1}, v{W+3}")
        e(f"v_cvt_pk_f16_f32 v{W+10}, v{W+4}, v{W+6}")
        e(f"v_cvt_pk_f16_f32 v{W+11}, v{W+5}, v{W+7}")
        for k in range(4):
            e(f"ds_write_b32 v10, v{W+8+k} offset:{64*q + 384*k}")
        W = 116 if W == 104 else 104
    st()
    e("s_waitcnt lgkmcnt(0)")
    e("s_barrier")
    st()
    e("s_cmp_eq_u32 s35, 0")
    e(f"s_cbranch_scc1 {name}_END")
    e(f"v_mul_u32_u24 v10, {PITCH}, v4")
    e("v_lshl_add_u32 v10, v5, 4, v10")
    D = 16; AF = 96
    seq = [(g, t, mi) for g in range(4) for t in range(NSTEP[g]) for mi in range(2)]
    tb_index = {}; k = 0
    for g in range(4):
        for t in range(NSTEP[g]):
            tb_index[(g, t)] = k; k += 1
    NB = 8
    def rd(i):
        g, t, mi = seq[i]
        a = AF + 4*(i % NB)
        e(f"ds_read_b128 v[{a}:{a+3}], v10 offset:{mi*16*PITCH + g*384 + 64*t}")
    for i in range(NB): rd(i)
    e("s_waitcnt vmcnt(0)")
    for i, (g, t, mi) in enumerate(seq):
        rem = min(NB - 1, len(seq) - 1 - i)
        e(f"s_waitcnt lgkmcnt({rem})")
        a = AF + 4*(i % NB); d = D + (g*2+mi)*4; tb = TB + 4*tb_index[(g, t)]
        e(f"v_mfma_f32_16x16x32_f16 v[{d}:{d+3}], v[{a}:{a+3}], v[{tb}:{tb+3}], {'0' if t == 0 else f'v[{d}:{d+3}]'}")
        if i + NB < len(seq): rd(i + NB)
    e("s_lshl_b32 s36, s34, 4")
    e("v_add_u32 v11, s36, v4")
    e("v_lshl_add_u32 v12, v5, 8, s30")
    e("v_mul_u32_u24 v12, 1408, v12")
    e("v_lshl_add_u32 v13, v11, 2, v12")
    e("v_sub_u32 v14, 320, v11")
    e("v_lshl_add_u32 v14, v14, 2, v12")
    e("v_cmp_lt_u32 vcc, 160, v11")
    e("v_mov_b32 v15, 0x80000000")
    e("v_cndmask_b32 v13, v13, v15, vcc")
    e("v_cndmask_b32 v14, v14, v15, vcc")
    st()
    BK, BM = 48, 56
    for mi in range(2):
        for r in range(4):
            ce, co, se, so = (D + (g*2+mi)*4 + r for g in range(4))
            t = 96 + 4*r
            e(f"v_add_f32 v{t}, v{ce}, v{co}")
            e(f"v_sub_f32 v{t+1}, v{ce}, v{co}")
            e(f"v_add_f32 v{t+2}, v{se}, v{so}")
            e(f"v_sub_f32 v{t+3}, v{se}, v{so}")
        for r in range(4):
            t = 96 + 4*r
            e(f"v_cvt_pk_f16_f32 v{BK+4*mi+r}, v{t}, -v{t+2}")
            e(f"v_cvt_pk_f16_f32 v{BM+4*mi+r}, v{t+1}, v{t+3}")
    e("s_nop 1")
    O = 128
    for col, B in enumerate((BK, BM)):
        for mo in range(2):
            for ri in range(2):
                d = O + ((col*2+mo)*2+ri)*4
                for mi in range(2):
                    g = G + ((mo*2+ri)*2+mi)*4
                    e(f"v_mfma_f32_16x16x32_f16 v[{d}:{d+3}], v[{g}:{g+3}], v[{B+4*mi}:{B+4*mi+3}], {'0' if mi == 0 else f'v[{d}:{d+3}]'}")
    for k in range(8):
        e(f"s_mov_b32 s{44+k}, {(16*(k>>2)+(k&3))*64*1408}")
    for col in range(2):
        if col == 1: e("s_nop 3")
        for mo in range(2):
            for r in range(4):
                dr = O + ((col*2+mo)*2+0)*4 + r; di = O + ((col*2+mo)*2+1)*4 + r
                e(f"v_cvt_pk_f16_f32 v{dr}, v{dr}, v{di}")
                e(f"buffer_store_dword v{dr}, v{13+col}, s[{sU}:{sU+3}], s{44+4*mo+r} offen")
    st()
    if stamps: e("s_waitcnt vmcnt(0)")
    st(); st(True)
    st.dump(name)
    e(f"{name}_END:")
    e("s_endpgm")
    if side:
        e(f"{name}_RP:")
        e("s_sub_u32 s3, s2, 128")
        gen_wprep(e, f"{name}_rpj", 3)
    return name, 212
```

```python
from fw import *
from k2 import table_srd
from k1 import ln_rows, f2u
L_C = 0
L_V = 16384
L_Y = L_V + 45056
YLP = 1552
L_O = L_Y + 8 * YLP
YOP = 1296
K3H_LDS = L_O + 8 * YOP

def gen_k3(e, name="k3_kernel", stamps=False):
    st = Stamps(e, base=62, on=stamps)
    kernel_head(e, name)
    sX, sV, sT, sH, sL = 12, 16, 20, 24, 28
    e("s_cmp_ge_u32 s2, 256")
    e(f"s_cbranch_scc1 {name}_END")
    st(); st(True)
    e("s_load_dwordx2 s[4:5], s[0:1], 0")
    e("s_load_dwordx2 s[8:9], s[0:1], 72")
    table_srd(e, sT, "k3tab", 16384)
    e("v_lshrrev_b32 v1, 6, v0")
    e("v_and_b32 v2, 63, v0")
    e("s_and_b32 s34, s2, 63")
    e("s_lshr_b32 s35, s2, 6")
    e("v_readfirstlane_b32 s33, v1")
    e("v_lshlrev_b32 v3, 4, v2")
    e("s_lshl_b32 s36, s33, 11")
    for j in range(2):
        e(f"s_add_u32 m0, s36, {L_C + 1024*j}")
        e(f"s_add_u32 s37, s36, {1024*j}")
        e(f"buffer_load_dwordx4 v3, s[{sT}:{sT+3}], s37 offen lds")
    e("s_lshl_b32 s36, s33, 6")
    for j in range(6):
        e(f"v_add_u32 v8, s36, v2")
        if j: e(f"v_add_u32 v8, {512*j}, v8")
        e("v_mul_u32_u24 v9, 47663, v8")
        e("v_lshrrev_b32 v9, 22, v9")
        e("v_mul_u32_u24 v10, 88, v9")
        e("v_sub_u32 v10, v8, v10")
        e("v_mul_u32_u24 v9, 90112, v9")
        e(f"v_lshl_add_u32 v{16+j}, v10, 4, v9")
    e("s_mul_i32 s37, s34, 1408")
    e("s_lshl_b32 s36, s33, 10")
    e("s_waitcnt lgkmcnt(0)")
    srd(e, sV, 8, WS_V, U_BYTES)
    for j in range(6):
        if j == 5:
            e("s_cmp_ge_u32 s33, 4")
            e(f"s_cbranch_scc1 {name}_v5")
        e(f"s_add_u32 m0, s36, {L_V + 8192*j}")
        e("s_nop 0")
        e(f"buffer_load_dwordx4 v{16+j}, s[{sV}:{sV+3}], s37 offen lds")
    e(f"{name}_v5:")
    srd(e, sX, 4, 0, H_BYTES)
    srd(e, sH, 8, WS_H, H_BYTES)
    srd(e, sL, 8, WS_LN2, H_BYTES)
    e("s_lshl_b32 s38, s35, 3")
    e("s_add_u32 s38, s38, s33")
    e("s_lshl_b32 s38, s38, 6")
    e("s_add_u32 s38, s38, s34")
    e("s_mul_i32 s38, s38, 1280")
    e("v_lshlrev_b32 v6, 2, v2")
    XR = 24
    for q in range(5):
        e(f"buffer_load_dword v{XR+q}, v6, s[{sX}:{sX+3}], s38 offen offset:{256*q}")
    st()
    e("v_and_b32 v4, 15, v2")
    e("v_lshrrev_b32 v5, 4, v2")
    HM = 32
    e(f"s_mov_b32 s40, {f2u(1/2048):#x}")
    e(f"s_mov_b32 s41, {f2u(1/32**0.5):#x}")
    e("v_and_b32 v8, 7, v4")
    e("s_lshl_b32 s36, s35, 3")
    e("v_add_u32 v8, s36, v8")
    e("v_lshl_add_u32 v8, v8, 6, s34")
    e("v_cmp_lt_u32 vcc, 7, v4")
    T = 40
    for k in range(8):
        t, i = k >> 2, k & 3
        r = T + 3*k
        e(f"v_lshl_add_u32 v{r}, v5, 2, {16*t+i}")
        e(f"v_mul_u32_u24 v{r}, v{r}, v8")
        e(f"v_and_b32 v{r}, 2047, v{r}")
        e(f"v_cvt_f32_u32 v{r}, v{r}")
        e(f"v_mul_f32 v{r}, s40, v{r}")
        e(f"v_cos_f32 v{r+1}, v{r}")
        e(f"v_sin_f32 v{r+2}, v{r}")
    for k in range(8):
        r = T + 3*k
        e(f"v_mul_f32 v{r+1}, s41, v{r+1}")
        e(f"v_mul_f32 v{r+2}, s41, v{r+2}")
    for k in range(8):
        r = T + 3*k
        e(f"v_cvt_pk_f16_f32 v{r}, v{r+1}, -v{r+2}")
        e(f"v_cvt_pk_f16_f32 v{r+1}, v{r+2}, v{r+1}")
    for k in range(8):
        r = T + 3*k
        e(f"v_cndmask_b32 v{HM+k}, v{r}, v{r+1}, vcc")
    e("s_cmp_eq_u32 s33, 7")
    e(f"s_cbranch_scc0 {name}_nz")
    e("v_mul_u32_u24 v8, 21846, v2")
    e("v_lshrrev_b32 v8, 16, v8")
    e("v_mul_u32_u24 v9, 3, v8")
    e("v_sub_u32 v9, v2, v9")
    e("v_lshrrev_b32 v10, 1, v8")
    e(f"v_mul_u32_u24 v10, {YLP}, v10")
    e("v_and_b32 v8, 1, v8")
    e("v_mul_u32_u24 v8, 768, v8")
    e("v_add_u32 v10, v10, v8")
    e("v_lshl_add_u32 v10, v9, 5, v10")
    for k in range(4): e(f"v_mov_b32 v{12+k}, 0")
    e("v_cmp_gt_u32 vcc, 48, v2")
    e("s_and_saveexec_b64 s[42:43], vcc")
    e(f"ds_write_b128 v10, v[12:15] offset:{L_Y + 672}")
    e(f"ds_write_b128 v10, v[12:15] offset:{L_Y + 688}")
    e("s_mov_b64 exec, s[42:43]")
    e(f"{name}_nz:")
    e(f"v_mul_u32_u24 v8, {4*1408}, v5")
    e("v_lshl_add_u32 v8, v4, 2, v8")
    e("s_lshl_b32 s36, s33, 6")
    e(f"s_add_u32 s36, s36, {L_V}")
    e("v_add_u32 v8, s36, v8")
    e("v_and_b32 v9, 7, v4")
    e(f"v_mul_u32_u24 v9, {YLP}, v9")
    e("v_lshrrev_b32 v10, 3, v4")
    e("v_mul_u32_u24 v10, 768, v10")
    e("v_add_u32 v9, v9, v10")
    e("v_lshl_add_u32 v9, v5, 3, v9")
    e("s_lshl_b32 s36, s33, 5")
    e(f"s_add_u32 s36, s36, {L_Y}")
    e("v_add_u32 v9, s36, v9")
    st()
    e("s_waitcnt vmcnt(5) lgkmcnt(0)")
    e("s_barrier")
    st()
    VD = 40
    D = 64
    def rdA(tl):
        for k in range(8):
            e(f"ds_read_b32 v{VD+8*tl+k}, v8 offset:{(16*(k>>2)+(k&3))*1408 + 512*tl}")
    def mmA(tl):
        d = D + 4*tl
        e(f"v_mfma_f32_16x16x32_f16 v[{d}:{d+3}], v[{VD+8*tl}:{VD+8*tl+3}], v[{HM}:{HM+3}], 0")
        e(f"v_mfma_f32_16x16x32_f16 v[{d}:{d+3}], v[{VD+8*tl+4}:{VD+8*tl+7}], v[{HM+4}:{HM+7}], v[{d}:{d+3}]")
    def wrA(tl):
        d = D + 4*tl
        e(f"v_cvt_pk_f16_f32 v{d}, v{d}, v{d+1}")
        e(f"v_cvt_pk_f16_f32 v{d+1}, v{d+2}, v{d+3}")
        e(f"ds_write_b64 v9, v[{d}:{d+1}] offset:{256*tl}")
    CB = 96
    e("s_cmp_lt_u32 s33, 5")
    e(f"s_cbranch_scc0 {name}_a2")
    rdA(0); rdA(1); rdA(2)
    e("s_waitcnt lgkmcnt(8)")
    e("s_waitcnt lgkmcnt(8)")
    mmA(0); mmA(1)
    e("s_waitcnt lgkmcnt(0)")
    mmA(2)
    for i in range(8): e(f"ds_read_b128 v[{CB+4*i}:{CB+4*i+3}], v3 offset:{L_C + 1024*i}")
    wrA(0); wrA(1); wrA(2)
    e(f"s_branch {name}_a3")
    e(f"{name}_a2:")
    rdA(0); rdA(1)
    e("s_waitcnt lgkmcnt(0)")
    mmA(0); mmA(1)
    for i in range(8): e(f"ds_read_b128 v[{CB+4*i}:{CB+4*i+3}], v3 offset:{L_C + 1024*i}")
    e("s_nop 1")
    wrA(0); wrA(1)
    e(f"{name}_a3:")
    for i in range(8, 16): e(f"ds_read_b128 v[{CB+4*i}:{CB+4*i+3}], v3 offset:{L_C + 1024*i}")
    e("v_min_u32 v10, 2, v5")
    e("v_lshlrev_b32 v10, 2, v10")
    e("v_lshrrev_b32 v11, 2, v4")
    e("v_add_u32 v10, v10, v11")
    e("v_lshlrev_b32 v10, 6, v10")
    e("v_and_b32 v11, 3, v4")
    e("v_lshl_add_u32 v10, v11, 3, v10")
    e(f"s_mul_i32 s36, s33, {YLP}")
    e(f"s_add_u32 s36, s36, {L_Y}")
    e("v_add_u32 v10, s36, v10")
    e("v_mul_u32_u24 v11, 160, v5")
    e("v_lshl_add_u32 v11, v4, 1, v11")
    e(f"s_mul_i32 s36, s33, {YOP}")
    e(f"s_add_u32 s36, s36, {L_O}")
    e("v_add_u32 v11, s36, v11")
    e("v_add_u32 v7, s36, v6")
    e("s_waitcnt lgkmcnt(0)")
    e("s_barrier")
    st()
    AF = 40
    for mt in range(2):
        e(f"ds_read_b64_tr_b16 v[{AF+4*mt}:{AF+4*mt+1}], v10 offset:{32*mt}")
        e(f"ds_read_b64_tr_b16 v[{AF+4*mt+2}:{AF+4*mt+3}], v10 offset:{32*mt+768}")
    Z = 48
    e("s_waitcnt lgkmcnt(0)")
    for mt in range(2):
        for nt2 in range(2):
            for ri in range(2):
                d = Z + ((mt*2+nt2)*2+ri)*4; c = CB + (nt2*2+ri)*4
                e(f"v_mfma_f32_16x16x32_f16 v[{d}:{d+3}], v[{AF+4*mt}:{AF+4*mt+3}], v[{c}:{c+3}], 0")
    e("s_nop 4")
    TW = CB + 32
    BF = 80
    for mt in range(2):
        for nt2 in range(2):
            zr = Z + ((mt*2+nt2)*2)*4; zi = zr + 4
            for r in range(4):
                tc = TW + ((mt*2+nt2)*4+r)*2
                e(f"v_mul_f32 v{160+2*r}, v{zr+r}, v{tc}")
                e(f"v_mul_f32 v{161+2*r}, v{zr+r}, v{tc+1}")
            for r in range(4):
                tc = TW + ((mt*2+nt2)*4+r)*2
                e(f"v_fma_f32 v{160+2*r}, -v{zi+r}, v{tc+1}, v{160+2*r}")
                e(f"v_fmac_f32 v{161+2*r}, v{zi+r}, v{tc}")
            for r in range(4):
                e(f"v_cvt_pk_f16_f32 v{BF+(nt2*2+mt)*4+r}, v{160+2*r}, v{161+2*r}")
    e("s_nop 1")
    O = 48
    for nt2 in range(2):
        for mo in range(2):
            d = O + (nt2*2+mo)*4
            for mt in range(2):
                a = CB + 16 + (mo*2+mt)*4; b = BF + (nt2*2+mt)*4
                e(f"v_mfma_f32_16x16x32_f16 v[{d}:{d+3}], v[{a}:{a+3}], v[{b}:{b+3}], {'0' if mt == 0 else f'v[{d}:{d+3}]'}")
    e("v_cmp_gt_u32 vcc, 4, v4")
    e("s_nop 6")
    for nt2 in range(2):
        for mo in range(2):
            d = O + (nt2*2+mo)*4
            e(f"v_cvt_pk_bf16_f32 v{d}, v{d}, v{d+1}")
            e(f"v_cvt_pk_bf16_f32 v{d+2}, v{d+2}, v{d+3}")
    for nt2 in range(2):
        if nt2 == 1: e("s_and_saveexec_b64 s[42:43], vcc")
        for mo in range(2):
            d = O + (nt2*2+mo)*4
            for r in range(4):
                off = 40*(16*mo + r) + 32*nt2
                op = "ds_write_b16_d16_hi" if (r & 1) else "ds_write_b16"
                e(f"{op} v11, v{d + (r & 2)} offset:{off}")
    e("s_mov_b64 exec, s[42:43]")
    YR = 32
    e("s_waitcnt lgkmcnt(0)")
    st()
    for q in range(5):
        e(f"ds_read_b32 v{YR+q}, v7 offset:{256*q}")
    e("s_mov_b32 s49, 0xffff0000")
    e("s_waitcnt vmcnt(0) lgkmcnt(0)")
    H = 40
    for i in range(5):
        e(f"v_lshlrev_b32 v{H+2*i}, 16, v{XR+i}")
        e(f"v_and_b32 v{H+2*i+1}, s49, v{XR+i}")
        e(f"v_lshlrev_b32 v{XR+i}, 16, v{YR+i}")
        e(f"v_and_b32 v{YR+i}, s49, v{YR+i}")
    for i in range(5):
        e(f"v_add_f32 v{H+2*i}, v{H+2*i}, v{XR+i}")
        e(f"v_add_f32 v{H+2*i+1}, v{H+2*i+1}, v{YR+i}")
    for i in range(5):
        e(f"v_cvt_pk_bf16_f32 v{XR+i}, v{H+2*i}, v{H+2*i+1}")
    for q in range(5):
        e(f"buffer_store_dword v{XR+q}, v6, s[{sH}:{sH+3}], s38 offen offset:{256*q}")
    for i in range(5):
        e(f"v_lshlrev_b32 v{H+2*i}, 16, v{XR+i}")
        e(f"v_and_b32 v{H+2*i+1}, s49, v{XR+i}")
    ln_rows(e, H, 1, 10, 56, 49)
    for i in range(5):
        e(f"v_cvt_pk_bf16_f32 v{YR+i}, v{H+2*i}, v{H+2*i+1}")
    for q in range(5):
        e(f"buffer_store_dword v{YR+q}, v6, s[{sL}:{sL+3}], s38 offen offset:{256*q}")
    st()
    if stamps: e("s_waitcnt vmcnt(0)")
    st(); st(True)
    st.dump(name)
    e(f"{name}_END:")
    e("s_endpgm")
    return name, 168
```

```python
from fw import *
import struct
def f2u(x): return struct.unpack("<I", struct.pack("<f", x))[0]

def gen_k4(e, name="k4_kernel", stamps=False):
    st = Stamps(e, base=60, on=stamps)
    kernel_head(e, name)
    sA, sB, sO = 12, 16, 24
    e("s_cmp_ge_u32 s2, 256")
    e(f"s_cbranch_scc1 {name}_END")
    st(); st(True)
    e("s_load_dwordx2 s[8:9], s[0:1], 72")
    e("v_lshrrev_b32 v1, 6, v0")
    e("v_and_b32 v2, 63, v0")
    e("s_and_b32 s28, s2, 7")
    e("v_readfirstlane_b32 s33, v1")
    e("s_lshr_b32 s29, s2, 3")
    e("s_lshr_b32 s30, s28, 1")
    e("s_lshl_b32 s30, s30, 2")
    e("s_and_b32 s31, s29, 3")
    e("s_add_u32 s30, s30, s31")
    e("s_and_b32 s31, s28, 1")
    e("s_lshl_b32 s31, s31, 3")
    e("s_lshr_b32 s32, s29, 2")
    e("s_add_u32 s31, s31, s32")
    vOA = 3; vOB = 4
    e("v_lshrrev_b32 v8, 3, v2")
    e("v_and_b32 v9, 7, v2")
    e("v_xor_b32 v9, v9, v8")
    e("v_lshlrev_b32 v9, 4, v9")
    e("s_lshl_b32 s34, s33, 4")
    e("v_add_u32 v8, s34, v8")
    e("v_mul_u32_u24 v8, 1280, v8")
    e(f"v_add_u32 v{vOA}, v8, v9")
    e(f"v_lshlrev_b32 v{vOB}, 4, v2")
    e("s_and_b32 s38, s33, 3")
    e("s_lshr_b32 s39, s33, 2")
    e("s_mul_i32 s34, s30, 163840")
    e("s_mul_i32 s35, s31, 245760")
    e("s_mul_i32 s37, s33, 3072")
    e("s_add_u32 s35, s35, s37")
    e("s_lshl_b32 s36, s33, 11")
    e("s_add_u32 s37, s37, 16384")
    e("s_waitcnt lgkmcnt(0)")
    srd(e, sA, 8, WS_LN2, H_BYTES)
    srd(e, sB, 8, WS_PG, PG_BYTES)
    STG = 40960
    def dma_list(kc):
        buf = (kc % 3) * STG
        L = []
        for j in range(2):
            L.append([f"s_add_u32 m0, s36, {buf + 1024*j}",
                      f"s_add_u32 s41, s34, {j*10240 + kc*128}",
                      f"buffer_load_dwordx4 v{vOA}, s[{sA}:{sA+3}], s41 offen lds"])
        for j in range(3):
            L.append([f"s_add_u32 m0, s37, {buf + 1024*j}",
                      f"s_add_u32 s41, s35, {kc*24576 + 1024*j}",
                      f"buffer_load_dwordx4 v{vOB}, s[{sB}:{sB+3}], s41 offen lds"])
        return L
    for kc in range(3):
        for blk in dma_list(kc):
            for ins in blk: e(ins)
    st()
    srd(e, sO, 8, WS_A, A_BYTES)
    vRA0, vRA1, vP = 12, 13, 14
    e("v_and_b32 v8, 15, v2")
    e("v_lshrrev_b32 v9, 4, v2")
    e("v_and_b32 v10, 7, v8")
    e("v_xor_b32 v10, v10, v9")
    e("v_lshlrev_b32 v10, 4, v10")
    e("v_lshlrev_b32 v11, 7, v8")
    e("v_add_u32 v10, v10, v11")
    e("s_lshl_b32 s40, s38, 12")
    e(f"v_add_u32 v{vRA0}, s40, v10")
    e(f"v_xor_b32 v{vRA1}, 64, v{vRA0}")
    e("s_mul_i32 s40, s39, 3072")
    e("s_add_u32 s40, s40, 16384")
    e(f"v_add_u32 v{vP}, s40, v{vOB}")
    for b in range(3):
        for k, r in enumerate((vRA0, vRA1, vP)):
            e(f"v_add_u32 v{16+4*b+k}, {b*STG}, v{r}")
    ACC = 176
    FS = [32, 96]
    def read_list(F, it):
        b = it % 3
        L = []
        for s in range(2):
            Fs = F + 32*s
            for i in range(2):
                L.append(f"ds_read_b128 v[{Fs+4*i}:{Fs+4*i+3}], v{16+4*b+s} offset:{2048*i}")
            for gu in range(2):
                for tt in range(3):
                    base = Fs + 8 + (gu*3+tt)*4
                    L.append(f"ds_read_b128 v[{base}:{base+3}], v{16+4*b+2} offset:{((gu*2+s)*6+tt)*1024}")
        return L
    def mfma_list(F, first):
        L = []
        for s in range(2):
            Fs = F + 32*s
            for i in range(2):
                for gu in range(2):
                    for tt in range(3):
                        d = ACC + ((i*2+gu)*3+tt)*4
                        w = Fs + 8 + (gu*3+tt)*4
                        c = "0" if (first and s == 0) else f"v[{d}:{d+3}]"
                        L.append(f"v_mfma_f32_16x16x32_bf16 v[{d}:{d+3}], v[{w}:{w+3}], v[{Fs+4*i}:{Fs+4*i+3}], {c}")
        return L
    e("s_waitcnt vmcnt(10)")
    e("s_barrier")
    st()
    for ins in read_list(FS[0], 0): e(ins)
    for it in range(10):
        F = FS[it & 1]; Fn = FS[(it + 1) & 1]
        if it < 9:
            e(f"s_waitcnt vmcnt({5 if it < 8 else 0}) lgkmcnt(0)")
            e("s_barrier")
        else:
            e("s_waitcnt lgkmcnt(0)")
        if it in (1, 5): st()
        M = mfma_list(F, it == 0)
        Rd = read_list(Fn, it + 1) if it < 9 else []
        Dm = dma_list(it + 3) if it + 3 < 10 else []
        for k, m in enumerate(M):
            e(m)
            if k < len(Rd): e(Rd[k])
            if k % 4 == 3 and k // 4 < len(Dm):
                for ins in Dm[k // 4]: e(ins)
    st()
    e("s_lshl_b32 s40, s30, 3")
    e("s_lshl_b32 s41, s38, 1")
    e("s_add_u32 s40, s40, s41")
    e("s_mul_i32 s40, s40, 49152")
    e("s_mul_i32 s41, s31, 6")
    e("s_mul_i32 s42, s39, 3")
    e("s_add_u32 s41, s41, s42")
    for tt in range(3):
        e(f"s_add_u32 s42, s41, {tt}")
        e("s_lshr_b32 s43, s42, 1")
        e("s_lshl_b32 s43, s43, 10")
        e("s_and_b32 s42, s42, 1")
        e("s_lshl_b32 s42, s42, 3")
        e("s_add_u32 s43, s43, s42")
        e(f"s_add_u32 s{46+tt}, s40, s43")
        e(f"s_add_u32 s{49+tt}, s{46+tt}, 49152")
    c1 = -2.0 * 1.4426950408889634 * 0.7978845608028654
    e(f"v_mov_b32 v10, {f2u(c1*0.044715):#x}")
    e("s_mov_b32 s44, 0xffff0000")
    st()
    T = 32
    for i in range(2):
        G = [ACC + ((i*2+0)*3+tt)*4 + r for tt in range(3) for r in range(4)]
        U = [ACC + ((i*2+1)*3+tt)*4 + r for tt in range(3) for r in range(4)]
        n = 12
        X = [T + k for k in range(n)]; UU = [T + 12 + k for k in range(n)]; P = [T + 24 + k for k in range(n)]
        for k in range(0, n, 2):
            e(f"v_cvt_pk_bf16_f32 v{X[k]}, v{G[k]}, v{G[k+1]}")
            e(f"v_cvt_pk_bf16_f32 v{UU[k]}, v{U[k]}, v{U[k+1]}")
        for k in range(0, n, 2):
            e(f"v_and_b32 v{X[k+1]}, s44, v{X[k]}")
            e(f"v_lshlrev_b32 v{X[k]}, 16, v{X[k]}")
        for k in range(n):
            e(f"v_mul_f32 v{P[k]}, v{X[k]}, v{X[k]}")
        for k in range(n):
            e(f"v_fmaak_f32 v{P[k]}, v{P[k]}, v10, {f2u(c1):#x}")
        for k in range(n):
            e(f"v_mul_f32 v{P[k]}, v{X[k]}, v{P[k]}")
        for k in range(n):
            e(f"v_exp_f32 v{P[k]}, v{P[k]}")
        for k in range(0, n, 2):
            e(f"v_and_b32 v{UU[k+1]}, s44, v{UU[k]}")
            e(f"v_lshlrev_b32 v{UU[k]}, 16, v{UU[k]}")
        for k in range(n):
            e(f"v_add_f32 v{P[k]}, 1.0, v{P[k]}")
        for k in range(n):
            e(f"v_rcp_f32 v{P[k]}, v{P[k]}")
        e("s_nop 0")
        for k in range(n):
            e(f"v_mul_f32 v{P[k]}, v{X[k]}, v{P[k]}")
        for k in range(0, n, 2):
            e(f"v_cvt_pk_bf16_f32 v{P[k]}, v{P[k]}, v{P[k+1]}")
        for k in range(0, n, 2):
            e(f"v_and_b32 v{P[k+1]}, s44, v{P[k]}")
            e(f"v_lshlrev_b32 v{P[k]}, 16, v{P[k]}")
        for k in range(n):
            e(f"v_mul_f32 v{P[k]}, v{P[k]}, v{UU[k]}")
        for tt in range(3):
            o = 80 + 2*(i*3+tt)
            e(f"v_cvt_pk_bf16_f32 v{o}, v{P[4*tt]}, v{P[4*tt+1]}")
            e(f"v_cvt_pk_bf16_f32 v{o+1}, v{P[4*tt+2]}, v{P[4*tt+3]}")
            e(f"buffer_store_dwordx2 v[{o}:{o+1}], v{vOB}, s[{sO}:{sO+3}], s{46+3*i+tt} offen")
    st()
    if stamps: e("s_waitcnt vmcnt(0)")
    st(); st(True)
    if stamps: wg_timeline(e, name, 62)
    st.dump(name, shift=6)
    e(f"{name}_END:")
    e("s_endpgm")
    return name, 224
```

```python
from fw import *
def gen_k5(e, name="k5_kernel", stamps=False, PD=3):
    st = Stamps(e, base=60, on=stamps)
    kernel_head(e, name)
    sA, sW, sH, sO = 12, 16, 20, 24
    e("s_cmp_ge_u32 s2, 256")
    e(f"s_cbranch_scc1 {name}_END")
    st(); st(True)
    e("s_load_dwordx2 s[6:7], s[0:1], 56")
    e("s_load_dwordx2 s[8:9], s[0:1], 72")
    e("v_lshrrev_b32 v1, 6, v0")
    e("v_and_b32 v2, 63, v0")
    e("s_and_b32 s28, s2, 7")
    e("v_readfirstlane_b32 s33, v1")
    e("s_lshr_b32 s29, s2, 3")
    e("s_lshl_b32 s30, s28, 2")
    e("s_and_b32 s31, s29, 3")
    e("s_add_u32 s30, s30, s31")
    e("s_lshr_b32 s31, s29, 2")
    e("v_lshlrev_b32 v3, 4, v2")
    e("s_mul_i32 s34, s30, 196608")
    e("s_mul_i32 s35, s33, 12288")
    e("s_add_u32 s34, s34, s35")
    e("s_mul_i32 s35, s31, 245760")
    e("s_mul_i32 s36, s33, 61440")
    e("s_add_u32 s35, s35, s36")
    e("s_waitcnt lgkmcnt(0)")
    srd(e, sA, 8, WS_A, A_BYTES)
    srd(e, sW, 8, WS_PD, PD_BYTES)
    NS = PD + 1
    FB = 16
    ACC = FB + 36*NS
    ACC = (ACC + 3) // 4 * 4
    assert ACC + 80 <= 256
    def load_list(s):
        F = FB + 36*(s % NS)
        L = []
        for i in range(4):
            L.append([f"s_add_u32 s37, s34, {i*49152 + s*1024}",
                      f"buffer_load_dwordx4 v[{F+4*i}:{F+4*i+3}], v3, s[{sA}:{sA+3}], s37 offen"])
        for t in range(5):
            L.append([f"s_add_u32 s37, s35, {s*5120 + (t//4)*4096}" if t % 4 == 0 else "",
                      f"buffer_load_dwordx4 v[{F+16+4*t}:{F+16+4*t+3}], v3, s[{sW}:{sW+3}], s37 offen offset:{(t%4)*1024}"])
        return L
    for s in range(PD):
        for blk in load_list(s):
            for ins in blk:
                if ins: e(ins)
    st()
    srd(e, sH, 8, WS_H, H_BYTES)
    srd(e, sO, 6, 0, H_BYTES)
    e("v_and_b32 v11, 15, v2")
    e("v_lshrrev_b32 v12, 4, v2")
    for s in range(12):
        F = FB + 36*(s % NS)
        issued = min(12, s + PD)
        e(f"s_waitcnt vmcnt({9*(issued - (s+1))})")
        if s in (0, 1, 6): st()
        Ld = load_list(s + PD) if s + PD < 12 else []
        k = 0
        for i in range(4):
            for t in range(5):
                d = ACC + (i*5+t)*4
                c = "0" if s == 0 else f"v[{d}:{d+3}]"
                e(f"v_mfma_f32_16x16x32_bf16 v[{d}:{d+3}], v[{F+16+4*t}:{F+16+4*t+3}], v[{F+4*i}:{F+4*i+3}], {c}")
                if k % 2 == 1 and k // 2 < len(Ld):
                    for ins in Ld[k // 2]:
                        if ins: e(ins)
                k += 1
    st()
    e("s_mul_i32 s37, s33, 20480")
    e("v_add_u32 v14, s37, v3")
    e("s_mul_i32 s37, s33, 5120")
    e("v_add_u32 v15, s37, v3")
    e("v_add_u32 v13, 40960, v15")
    e("s_lshl_b32 s37, s30, 6")
    e("s_lshl_b32 s38, s33, 4")
    e("s_add_u32 s37, s37, s38")
    e("v_add_u32 v10, s37, v11")
    e("v_mul_u32_u24 v10, 1280, v10")
    e("v_lshl_add_u32 v10, v12, 3, v10")
    e("s_mul_i32 s37, s31, 160")
    e("v_add_u32 v10, s37, v10")
    HB = 96
    for t in range(5):
        e(f"buffer_load_dwordx2 v[{HB+2*t}:{HB+2*t+1}], v10, s[{sH}:{sH+3}], 0 offen offset:{32*t}")
    e("s_nop 4")
    for tile in range(20):
        e(f"ds_write_b128 v14, v[{ACC+4*tile}:{ACC+4*tile+3}] offset:{tile*1024}")
    e("s_waitcnt lgkmcnt(0)")
    e("s_barrier")
    st()
    R = 16
    for t in range(5):
        for w in range(4):
            e(f"ds_read_b128 v[{R+(t*4+w)*4}:{R+(t*4+w)*4+3}], v{15 if w < 2 else 13} offset:{t*1024 + (w&1)*20480}")
    e("s_mov_b32 s44, 0xffff0000")
    e("s_waitcnt vmcnt(0) lgkmcnt(0)")
    for t in range(5):
        b = R + t*16
        for r in range(4):
            e(f"v_add_f32 v{b+r}, v{b+r}, v{b+4+r}")
            e(f"v_add_f32 v{b+8+r}, v{b+8+r}, v{b+12+r}")
        for r in range(4):
            e(f"v_add_f32 v{b+r}, v{b+r}, v{b+8+r}")
        e(f"v_cvt_pk_bf16_f32 v{b+4}, v{b}, v{b+1}")
        e(f"v_cvt_pk_bf16_f32 v{b+5}, v{b+2}, v{b+3}")
        for r in range(4):
            src = b + 4 + (r >> 1)
            if r & 1: e(f"v_and_b32 v{b+8+r}, s44, v{src}")
            else: e(f"v_lshlrev_b32 v{b+8+r}, 16, v{src}")
            src = HB + 2*t + (r >> 1)
            if r & 1: e(f"v_and_b32 v{b+12+r}, s44, v{src}")
            else: e(f"v_lshlrev_b32 v{b+12+r}, 16, v{src}")
        for r in range(4):
            e(f"v_add_f32 v{b+8+r}, v{b+8+r}, v{b+12+r}")
        e(f"v_cvt_pk_bf16_f32 v{b}, v{b+8}, v{b+9}")
        e(f"v_cvt_pk_bf16_f32 v{b+1}, v{b+10}, v{b+11}")
        e(f"buffer_store_dwordx2 v[{b}:{b+1}], v10, s[{sO}:{sO+3}], 0 offen offset:{32*t}")
    st()
    if stamps: e("s_waitcnt vmcnt(0)")
    st(); st(True)
    if stamps: wg_timeline(e, name, 62)
    st.dump(name, shift=6)
    e(f"{name}_END:")
    e("s_endpgm")
    return name, ACC + 80
```

```python
from fw import *
def gen_repack(e, lbl, swg, ldsbase=0):
    e(f"{lbl}:")
    e("s_load_dwordx4 s[4:7], s[0:1], 32")
    e("s_load_dwordx2 s[8:9], s[0:1], 48")
    e("s_load_dwordx2 s[10:11], s[0:1], 72")
    e("v_lshrrev_b32 v1, 6, v0")
    e("v_and_b32 v2, 63, v0")
    e("s_nop 0")
    e("v_readfirstlane_b32 s33, v1")
    e(f"s_lshl_b32 s34, s{swg}, 3")
    e("s_add_u32 s34, s34, s33")
    e("s_cmp_ge_u32 s34, 960")
    e(f"s_cbranch_scc1 {lbl}_down")
    e("s_cmp_ge_u32 s34, 480")
    e("s_cselect_b32 s35, 1, 0")
    e("s_mul_i32 s36, s35, 480")
    e("s_sub_u32 s34, s34, s36")
    e("s_mul_i32 s36, s34, 2731")
    e("s_lshr_b32 s36, s36, 16")
    e("s_mul_i32 s37, s36, 24")
    e("s_sub_u32 s37, s34, s37")
    e("s_waitcnt lgkmcnt(0)")
    e("s_cmp_eq_u32 s35, 0")
    e("s_cselect_b32 s12, s4, s6")
    e("s_cselect_b32 s13, s5, s7")
    e(f"s_mov_b32 s14, {640*3072}")
    e("s_mov_b32 s15, 0x00020000")
    srd(e, 16, 10, WS_PG, PG_BYTES)
    e("s_mov_b32 s38, 3072")
    e("s_mov_b32 s46, 512")
    e("s_mov_b32 s47, 3")
    for i in range(4):
        e(f"s_lshl_b32 s40, s37, 2")
        e(f"s_add_u32 s40, s40, {i}")
        e("s_mul_i32 s41, s40, 10923")
        e("s_lshr_b32 s41, s41, 16")
        e("s_mul_i32 s42, s41, 6")
        e("s_sub_u32 s42, s40, s42")
        e("s_mul_i32 s41, s41, 10")
        e("s_lshr_b32 s43, s36, 1")
        e("s_add_u32 s41, s41, s43")
        e("s_lshl_b32 s41, s41, 1")
        e("s_add_u32 s41, s41, s35")
        e("s_lshl_b32 s41, s41, 1")
        e("s_and_b32 s43, s36, 1")
        e("s_add_u32 s41, s41, s43")
        e("s_mul_i32 s41, s41, 6")
        e("s_add_u32 s41, s41, s42")
        e(f"s_lshl_b32 s{50+i}, s41, 10")
    e(f"s_branch {lbl}_go")
    e(f"{lbl}_down:")
    e("s_sub_u32 s34, s34, 960")
    e("s_mul_i32 s36, s34, 6554")
    e("s_lshr_b32 s36, s36, 16")
    e("s_mul_i32 s37, s36, 10")
    e("s_sub_u32 s37, s34, s37")
    e("s_waitcnt lgkmcnt(0)")
    e("s_mov_b32 s12, s8")
    e("s_mov_b32 s13, s9")
    e(f"s_mov_b32 s14, {1536*1280}")
    e("s_mov_b32 s15, 0x00020000")
    srd(e, 16, 10, WS_PD, PD_BYTES)
    e("s_mov_b32 s38, 1280")
    e("s_mov_b32 s46, 2048")
    e("s_mov_b32 s47, 2")
    for i in range(4):
        e(f"s_lshl_b32 s40, s37, 2")
        e(f"s_add_u32 s40, s40, {i}")
        e("s_mul_i32 s41, s40, 13108")
        e("s_lshr_b32 s41, s41, 16")
        e("s_mul_i32 s42, s41, 5")
        e("s_sub_u32 s42, s40, s42")
        e("s_mul_i32 s41, s41, 48")
        e("s_add_u32 s41, s41, s36")
        e("s_mul_i32 s41, s41, 5")
        e("s_add_u32 s41, s41, s42")
        e(f"s_lshl_b32 s{50+i}, s41, 10")
    e(f"{lbl}_go:")
    e("v_lshrrev_b32 v3, 3, v2")
    e("v_mul_lo_u32 v3, v3, s38")
    e("v_and_b32 v4, 7, v2")
    e("v_lshl_add_u32 v3, v4, 4, v3")
    e("s_lshl_b32 s40, s36, 5")
    e("s_mul_i32 s40, s40, s38")
    e("s_lshl_b32 s41, s37, 7")
    e("s_add_u32 s40, s40, s41")
    e("s_lshl_b32 s41, s38, 3")
    e("s_lshl_b32 s42, s33, 12")
    if ldsbase: e(f"s_add_u32 s42, s42, {ldsbase}")
    for j in range(4):
        e(f"s_add_u32 m0, s42, {1024*j}")
        e("s_nop 0")
        e(f"buffer_load_dwordx4 v3, s[12:15], s40 offen lds")
        if j < 3: e("s_add_u32 s40, s40, s41")
    e("v_and_b32 v4, 15, v2")
    e("v_lshrrev_b32 v5, 4, v2")
    e("v_lshlrev_b32 v5, s47, v5")
    e("v_lshrrev_b32 v6, 2, v4")
    e("v_add_u32 v5, v5, v6")
    e("v_lshlrev_b32 v5, 7, v5")
    e("v_and_b32 v6, 3, v4")
    e("v_lshl_add_u32 v5, v6, 3, v5")
    e("v_add_u32 v5, s42, v5")
    e("v_add_u32 v6, s46, v5")
    e("v_lshlrev_b32 v7, 4, v2")
    e("s_waitcnt vmcnt(0)")
    for i in range(4):
        e(f"ds_read_b64_tr_b16 v[{8+4*i}:{9+4*i}], v5 offset:{32*i}")
        e(f"ds_read_b64_tr_b16 v[{10+4*i}:{11+4*i}], v6 offset:{32*i}")
    for i in range(4):
        e(f"s_waitcnt lgkmcnt({6-2*i})")
        e(f"buffer_store_dwordx4 v[{8+4*i}:{11+4*i}], v7, s[16:19], s{50+i} offen")
    e("s_endpgm")
```

```python
import numpy as np
def f16bits(a):
    return np.asarray(a, dtype=np.float64).astype(np.float16).view(np.uint16)

def g64_table():
    out = np.zeros((3, 4, 2, 64, 8), dtype=np.float64)
    for mt4 in range(4):
        for t in range(2):
            for l in range(64):
                m = l & 15; q4 = l >> 4
                bp = 16 * mt4 + m
                for j in range(8):
                    b = 32 * t + 16 * (j >> 2) + 4 * q4 + (j & 3)
                    ang = 2 * np.pi * ((b * bp) % 64) / 64
                    c = np.cos(ang) / 8; s = np.sin(ang) / 8
                    if (b*bp) % 16 == 0:
                        c = np.round(c*8)/8; s = np.round(s*8)/8
                    out[0, mt4, t, l, j] = c
                    out[1, mt4, t, l, j] = -s
                    out[2, mt4, t, l, j] = s
    return f16bits(out)

NSTEP = [6, 5, 5, 5]
def row_tables():
    tiles = []
    sc = 1 / np.sqrt(640.0)
    for j in range(11):
        parts = []
        for g in range(4):
            a = np.zeros((NSTEP[g], 64, 8))
            for t in range(NSTEP[g]):
                for l in range(64):
                    p = 16 * j + (l & 15); q4 = l >> 4
                    if p > 160: continue
                    for jj in range(8):
                        q = 32 * t + 8 * q4 + jj
                        if g == 0:
                            if q > 160: continue
                            n = 2 * q
                        elif g == 2:
                            if q > 159: continue
                            n = 2 * q
                        else:
                            n = 2 * q + 1
                        r = (p * n) % 640
                        ang = 2 * np.pi * r / 640
                        v = np.cos(ang) if g < 2 else np.sin(ang)
                        if r % 160 == 0: v = np.round(v)
                        a[t, l, jj] = v * sc
            parts.append(a.reshape(-1))
        tiles.append(np.concatenate(parts))
    return f16bits(np.stack(tiles))

def emit_data(label, arr16):
    b = np.ascontiguousarray(arr16).view(np.uint64).reshape(-1)
    out = [f".p2align 8\n{label}:"]
    i = 0; n = len(b)
    line = []
    while i < n:
        if b[i] == 0:
            j = i
            while j < n and b[j] == 0: j += 1
            if j - i >= 4:
                if line: out.append(".quad " + ",".join(line)); line = []
                out.append(f".zero {8*(j-i)}")
                i = j; continue
        line.append(f"0x{int(b[i]):x}")
        if len(line) == 16:
            out.append(".quad " + ",".join(line)); line = []
        i += 1
    if line: out.append(".quad " + ",".join(line))
    return "\n".join(out) + "\n"

def k3_table():
    out = np.zeros((16, 64, 8), dtype=np.uint16)
    def ex(a, den, num):
        r = num % den
        c = np.cos(2*np.pi*r/den); s = np.sin(2*np.pi*r/den)
        if (4*r) % den == 0: c = np.round(c); s = np.round(s)
        return c, s
    for nt2 in range(2):
        for ri in range(2):
            f = np.zeros((64, 8))
            for l in range(64):
                db = 16*nt2 + (l & 15); q4 = l >> 4
                if db >= 20: continue
                for j in range(8):
                    kb = 4*q4 + (j & 3); c_in = j >> 2
                    if kb > 10: continue
                    c, s = ex(0, 20, kb*db)
                    if ri == 0: f[l, j] = c if c_in == 0 else -s
                    else:       f[l, j] = s if c_in == 0 else c
            out[nt2*2+ri] = f16bits(f)
    sc = 1/np.sqrt(640.0)
    for mo in range(2):
        for mt in range(2):
            f = np.zeros((64, 8))
            for l in range(64):
                da = 16*mo + (l & 15); q4 = l >> 4
                for j in range(8):
                    ka = 16*mt + 4*q4 + (j >> 1); c_in = j & 1
                    c, s = ex(0, 32, ka*da)
                    f[l, j] = (c if c_in == 0 else -s) * sc
            out[4 + mo*2 + mt] = f16bits(f)
    tw = np.zeros((64, 32), dtype=np.float32)
    for l in range(64):
        q4 = l >> 4
        for mt in range(2):
            for nt2 in range(2):
                db = 16*nt2 + (l & 15)
                for r in range(4):
                    ka = 16*mt + 4*q4 + r
                    c, s = ex(0, 640, ka*db)
                    tw[l, ((mt*2+nt2)*4+r)*2] = c; tw[l, ((mt*2+nt2)*4+r)*2+1] = s
    for i in range(8):
        out[8+i] = tw[:, 4*i:4*i+4].copy().view(np.uint16).reshape(64, 8)
    return out
```

```python
from fw import *
import k1v2, k2, k3h, k4v4, k5v3
from k1 import PITCH
from tables import *
import sys
def build(out):
    e = Asm()
    ref = open("sequential_preLN__spectral_gfnet__geglu_ffn__prompt.s.ref").read()
    head = "".join(l + "\n" for l in ref.split("\n") if l.startswith(";") and "@launch" not in l)
    hdr = head + f"""; @launch kernel=k1_kernel grid=(308,1,1) block=(512,1,1) lds={32*PITCH}
; @launch kernel=k2_kernel grid=(168,1,1) block=(256,1,1) lds=0
; @launch kernel=k3_kernel grid=(256,1,1) block=(512,1,1) lds={k3h.K3H_LDS}
; @launch kernel=k4_kernel grid=(256,1,1) block=(512,1,1) lds=122880
; @launch kernel=k5_kernel grid=(256,1,1) block=(256,1,1) lds=81920
.amdgcn_target "amdgcn-amd-amdhsa--gfx950"
.text
"""
    ks = [k1v2.gen_k1(e), k2.gen_k2(e), k3h.gen_k3(e), k4v4.gen_k4(e), k5v3.gen_k5(e)]
    txt = hdr + e.text() + '.section .rodata,"a"\n' + "".join(kd(n, v) for n, v in ks) + emit_data("g64tab", g64_table()) + emit_data("rowtab", row_tables()) + emit_data("k3tab", k3_table())
    open(out, "w").write(txt)
if __name__ == "__main__":
    build(sys.argv[1] if len(sys.argv) > 1 else "a_v5.s")
```

```python
from fw import *
from k2 import table_srd
from repack4 import gen_repack4

def task_decode(e, stask, sa, stile):
    e(f"s_mul_i32 s{sa}, s{stask}, 3121")
    e(f"s_lshr_b32 s{sa}, s{sa}, 16")
    e(f"s_mul_i32 s{stile}, s{sa}, 21")
    e(f"s_sub_u32 s{stile}, s{stask}, s{stile}")

def gen_wprep(e, lbl, swg):
    e(f"{lbl}:")
    e("s_load_dwordx4 s[4:7], s[0:1], 8")
    e("s_load_dwordx2 s[8:9], s[0:1], 72")
    e("v_lshrrev_b32 v1, 6, v0")
    e("v_and_b32 v2, 63, v0")
    e("s_nop 0")
    e("v_readfirstlane_b32 s33, v1")
    e(f"s_lshl_b32 s38, s{swg}, 3")
    e("s_add_u32 s38, s38, s33")
    task_decode(e, 38, 39, 40)
    e("v_and_b32 v4, 15, v2")
    e("v_lshrrev_b32 v5, 4, v2")
    e("s_lshl_b32 s41, s40, 4")
    e("v_add_u32 v6, s41, v4")
    e("v_lshl_add_u32 v8, v5, 7, s39")
    e("v_mul_u32_u24 v8, 642, v8")
    e("v_lshl_add_u32 v8, v6, 1, v8")
    e("v_cmp_lt_u32 vcc, 320, v6")
    e("v_mov_b32 v10, 0x80000000")
    e("v_cndmask_b32 v8, v8, v10, vcc")
    e("s_waitcnt lgkmcnt(0)")
    srd(e, 12, 4, 0, 2048*642)
    srd(e, 16, 6, 0, 2048*642)
    srd(e, 20, 8, WS_WP, WP_BYTES)
    srd(e, 24, 8, WS_WMAX, 4096)
    for i in range(16):
        e(f"s_mov_b32 s42, {(16*(i>>2)+(i&3))*32*642}")
        e(f"buffer_load_ushort v{16+i}, v8, s[12:15], s42 offen")
        e(f"buffer_load_ushort v{32+i}, v8, s[16:19], s42 offen")
    e("v_lshlrev_b32 v3, 4, v2")
    e("s_lshl_b32 s42, s38, 12")
    e("v_mov_b32 v11, 0x7fff7fff")
    e("s_waitcnt vmcnt(0)")
    for i in range(16):
        e(f"v_lshl_or_b32 v{16+i}, v{32+i}, 16, v{16+i}")
    for i in range(4):
        e(f"buffer_store_dwordx4 v[{16+4*i}:{19+4*i}], v3, s[20:23], s42 offen offset:{1024*i}")
    for i in range(16):
        e(f"v_and_b32 v{32+i}, v11, v{16+i}")
    for i in range(1, 16):
        e(f"v_pk_max_u16 v32, v32, v{32+i}")
    e("v_lshrrev_b32 v33, 16, v32")
    e("v_and_b32 v32, 0xffff, v32")
    e("v_max_u32 v32, v32, v33")
    for sh in (8, 4, 2, 1):
        e("s_nop 1")
        e(f"v_max_u32_dpp v32, v32, v32 row_ror:{sh} row_mask:0xf bank_mask:0xf")
    for op in ("v_permlane16_swap_b32", "v_permlane32_swap_b32"):
        e("v_mov_b32 v33, v32")
        e("s_nop 1")
        e(f"{op} v33, v32")
        e("s_nop 0")
        e("v_max_u32 v32, v32, v33")
    e("s_lshl_b32 s42, s38, 2")
    e("v_mov_b32 v12, 0")
    e("s_mov_b64 exec, 1")
    e("buffer_store_dword v32, v12, s[24:27], s42 offen")
    e("s_endpgm")

def gen_k2(e, name="k2_kernel", stamps=False, side=True):
    st = Stamps(e, base=76, on=stamps)
    kernel_head(e, name)
    sU, sV, sW, sM, sT = 12, 16, 20, 24, 28
    e(f"s_cmp_ge_u32 s2, {168+360 if side else 168}")
    e(f"s_cbranch_scc1 {name}_END")
    if side:
        e("s_cmp_ge_u32 s2, 168")
        e(f"s_cbranch_scc1 {name}_RP")
    st(); st(True)
    e("s_load_dwordx2 s[8:9], s[0:1], 72")
    table_srd(e, sT, "g64tab", 24576)
    e("v_lshrrev_b32 v1, 6, v0")
    e("v_and_b32 v2, 63, v0")
    e("v_lshlrev_b32 v3, 4, v2")
    e("v_readfirstlane_b32 s37, v1")
    e("s_mul_i32 s36, s37, 6144")
    for j in range(6):
        e(f"s_add_u32 m0, s36, {1024*j}")
        e(f"s_add_u32 s38, s36, {1024*j}")
        e(f"buffer_load_dwordx4 v3, s[{sT}:{sT+3}], s38 offen lds")
    e("s_lshl_b32 s38, s2, 2")
    e("s_add_u32 s38, s38, s37")
    task_decode(e, 38, 39, 40)
    e("v_and_b32 v4, 15, v2")
    e("v_lshrrev_b32 v5, 4, v2")
    e("s_lshl_b32 s41, s40, 4")
    e("v_add_u32 v6, s41, v4")
    e("s_lshl_b32 s41, s39, 6")
    e("v_lshl_add_u32 v7, v5, 2, s41")
    e("v_mul_u32_u24 v7, 1408, v7")
    e("v_lshl_add_u32 v7, v6, 2, v7")
    e("v_cmp_lt_u32 vcc, 320, v6")
    e("v_mov_b32 v10, 0x80000000")
    e("v_cndmask_b32 v9, v7, v10, vcc")
    SO_U = 44
    for i in range(16):
        e(f"s_mov_b32 s{SO_U+i}, {(16*(i>>2)+(i&3))*1408}")
    e("s_waitcnt lgkmcnt(0)")
    srd(e, sU, 8, WS_U, U_BYTES)
    UD = 16
    for i in range(16):
        e(f"buffer_load_dword v{UD+i}, v9, s[{sU}:{sU+3}], s{SO_U+i} offen")
    srd(e, sW, 8, WS_WP, WP_BYTES)
    srd(e, sM, 8, WS_WMAX, 672*4)
    WP = 32
    e("s_lshl_b32 s42, s38, 12")
    for i in range(4):
        e(f"buffer_load_dwordx4 v[{WP+4*i}:{WP+4*i+3}], v3, s[{sW}:{sW+3}], s42 offen offset:{1024*i}")
    MX = 48
    for i in range(3):
        e(f"buffer_load_dwordx4 v[{MX+4*i}:{MX+4*i+3}], v3, s[{sM}:{sM+3}], 0 offen offset:{1024*i}")
    srd(e, sV, 8, WS_V, U_BYTES)
    st()
    e("v_mov_b32 v11, 2.0")
    e("v_cmp_eq_u32 vcc, 0, v6")
    e("v_cmp_eq_u32 s[60:61], 320, v6") if False else None
    e("s_nop 1")
    e("v_cndmask_b32 v11, v11, 1.0, vcc")
    e("v_cmp_eq_u32 vcc, 320, v6")
    e("s_nop 1")
    e("v_cndmask_b32 v11, v11, 1.0, vcc")
    e("s_mov_b32 s42, 0x05040100")
    e("s_mov_b32 s43, 0x07060302")
    e("s_waitcnt vmcnt(23)")
    e("s_barrier")
    C = 128
    for i in range(24):
        e(f"ds_read_b128 v[{C+4*i}:{C+4*i+3}], v3 offset:{1024*i}")
    BR, BI = 64, 72
    e("s_waitcnt vmcnt(7)")
    st()
    for i in range(8):
        e(f"v_perm_b32 v{BR+i}, v{UD+2*i+1}, v{UD+2*i}, s42")
        e(f"v_perm_b32 v{BI+i}, v{UD+2*i+1}, v{UD+2*i}, s43")
    DR, DI = 80, 96
    def cf(mat, mt4, t):
        b = C + 4 * ((mat * 4 + mt4) * 2 + t); return f"v[{b}:{b+3}]"
    def dft(inv):
        for mt4 in range(4):
            dr = f"v[{DR+4*mt4}:{DR+4*mt4+3}]"; di = f"v[{DI+4*mt4}:{DI+4*mt4+3}]"
            m_ri = 1 if inv else 2
            m_ir = 2 if inv else 1
            for t in range(2):
                br = f"v[{BR+4*t}:{BR+4*t+3}]"; bi = f"v[{BI+4*t}:{BI+4*t+3}]"
                e(f"v_mfma_f32_16x16x32_f16 {dr}, {cf(0,mt4,t)}, {br}, {dr if t else 0}")
                e(f"v_mfma_f32_16x16x32_f16 {di}, {cf(m_ir,mt4,t)}, {br}, {di if t else 0}")
                e(f"v_mfma_f32_16x16x32_f16 {dr}, {cf(m_ri,mt4,t)}, {bi}, {dr}")
                e(f"v_mfma_f32_16x16x32_f16 {di}, {cf(0,mt4,t)}, {bi}, {di}")
    e("s_waitcnt lgkmcnt(0)")
    dft(False)
    e("s_waitcnt vmcnt(0)")
    for i in range(1, 12):
        e(f"v_max_u32 v{MX}, v{MX}, v{MX+i}")
    for sh in (8, 4, 2, 1):
        e("s_nop 1")
        e(f"v_max_u32_dpp v{MX}, v{MX}, v{MX} row_ror:{sh} row_mask:0xf bank_mask:0xf")
    for op in ("v_permlane16_swap_b32", "v_permlane32_swap_b32"):
        e(f"v_mov_b32 v{MX+1}, v{MX}")
        e("s_nop 1")
        e(f"{op} v{MX+1}, v{MX}")
        e("s_nop 0")
        e(f"v_max_u32 v{MX}, v{MX}, v{MX+1}")
    e(f"v_lshrrev_b32 v{MX}, 7, v{MX}")
    e(f"v_max_u32 v{MX}, 1, v{MX}")
    e(f"v_min_u32 v{MX}, 253, v{MX}")
    e(f"v_sub_u32 v{MX+1}, 254, v{MX}")
    e(f"v_lshlrev_b32 v{MX+1}, 23, v{MX+1}")
    e(f"v_lshlrev_b32 v{MX}, 23, v{MX}")
    e(f"v_mul_f32 v11, v11, v{MX+1}")
    e("s_cmp_lg_u32 s38, 0")
    e(f"s_cbranch_scc1 {name}_nosc")
    srd(e, sM, 8, WS_SC, 4)
    e("v_mov_b32 v12, 0")
    e("s_mov_b64 exec, 1")
    e(f"buffer_store_dword v{MX}, v12, s[{sM}:{sM+3}], 0 offen")
    e("s_mov_b64 exec, -1")
    e(f"{name}_nosc:")
    e("v_mov_b32 v12, 0xffff0000")
    WR, WI = 48, 112
    for i in range(16):
        e(f"v_lshlrev_b32 v{WR+i if i else 13}, 16, v{WP+i}")
        e(f"v_and_b32 v{WI+i}, v12, v{WP+i}")
    e(f"v_mov_b32 v{WR}, v13")
    for i in range(16):
        e(f"v_mul_f32 v{WR+i}, v11, v{WR+i}")
        e(f"v_mul_f32 v{WI+i}, v11, v{WI+i}")
    YR, YI = 16, 32
    for i in range(16):
        e(f"v_mul_f32 v{YR+i}, v{DR+i}, v{WR+i}")
        e(f"v_mul_f32 v{YI+i}, v{DR+i}, v{WI+i}")
    for i in range(16):
        e(f"v_fma_f32 v{YR+i}, -v{DI+i}, v{WI+i}, v{YR+i}")
        e(f"v_fmac_f32 v{YI+i}, v{DI+i}, v{WR+i}")
    for i in range(8):
        e(f"v_cvt_pk_f16_f32 v{BR+i}, v{YR+2*i}, v{YR+2*i+1}")
        e(f"v_cvt_pk_f16_f32 v{BI+i}, v{YI+2*i}, v{YI+2*i+1}")
    e("s_nop 1")
    st()
    dft(True)
    e("s_nop 7")
    for i in range(16):
        e(f"v_cvt_pk_f16_f32 v{UD+i}, v{DR+i}, v{DI+i}")
        e(f"buffer_store_dword v{UD+i}, v7, s[{sV}:{sV+3}], s{SO_U+i} offen")
    st()
    if stamps: e("s_waitcnt vmcnt(0)")
    st(); st(True)
    st.dump(name)
    e(f"{name}_END:")
    e("s_endpgm")
    if side:
        e(f"{name}_RP:")
        e("s_sub_u32 s3, s2, 168")
        gen_repack4(e, f"{name}_rpj", 3)
    return name, 224
```

```python
from fw import *
from k2 import table_srd
from k1 import ln_rows, f2u
L_C = 0
L_V = 16384
L_Y = L_V + 45056
YLP = 1552
L_O = L_Y + 8 * YLP
YOP = 1296
K3H_LDS = L_O + 8 * YOP

def gen_k3(e, name="k3_kernel", stamps=False):
    st = Stamps(e, base=62, on=stamps)
    kernel_head(e, name)
    sX, sV, sT, sH, sL = 12, 16, 20, 24, 28
    e("s_cmp_ge_u32 s2, 256")
    e(f"s_cbranch_scc1 {name}_END")
    st(); st(True)
    e("s_load_dwordx2 s[4:5], s[0:1], 0")
    e("s_load_dwordx2 s[8:9], s[0:1], 72")
    table_srd(e, sT, "k3tab", 16384)
    e("v_lshrrev_b32 v1, 6, v0")
    e("v_and_b32 v2, 63, v0")
    e("s_and_b32 s34, s2, 63")
    e("s_lshr_b32 s35, s2, 6")
    e("v_readfirstlane_b32 s33, v1")
    e("v_lshlrev_b32 v3, 4, v2")
    e("s_lshl_b32 s36, s33, 11")
    for j in range(2):
        e(f"s_add_u32 m0, s36, {L_C + 1024*j}")
        e(f"s_add_u32 s37, s36, {1024*j}")
        e(f"buffer_load_dwordx4 v3, s[{sT}:{sT+3}], s37 offen lds")
    e("s_lshl_b32 s36, s33, 6")
    for j in range(6):
        e(f"v_add_u32 v8, s36, v2")
        if j: e(f"v_add_u32 v8, {512*j}, v8")
        e("v_mul_u32_u24 v9, 47663, v8")
        e("v_lshrrev_b32 v9, 22, v9")
        e("v_mul_u32_u24 v10, 88, v9")
        e("v_sub_u32 v10, v8, v10")
        e("v_mul_u32_u24 v9, 90112, v9")
        e(f"v_lshl_add_u32 v{16+j}, v10, 4, v9")
    e("s_mul_i32 s37, s34, 1408")
    e("s_lshl_b32 s36, s33, 10")
    e("s_waitcnt lgkmcnt(0)")
    srd(e, sV, 8, WS_V, U_BYTES)
    for j in range(6):
        if j == 5:
            e("s_cmp_ge_u32 s33, 4")
            e(f"s_cbranch_scc1 {name}_v5")
        e(f"s_add_u32 m0, s36, {L_V + 8192*j}")
        e("s_nop 0")
        e(f"buffer_load_dwordx4 v{16+j}, s[{sV}:{sV+3}], s37 offen lds")
    e(f"{name}_v5:")
    e(f"s_add_u32 s44, s8, {WS_SC}")
    e("s_addc_u32 s45, s9, 0")
    e("s_load_dword s46, s[44:45], 0")
    srd(e, sX, 4, 0, H_BYTES)
    srd(e, sH, 8, WS_H, H_BYTES)
    srd(e, sL, 8, WS_LN2, H_BYTES)
    e("s_lshl_b32 s38, s35, 3")
    e("s_add_u32 s38, s38, s33")
    e("s_lshl_b32 s38, s38, 6")
    e("s_add_u32 s38, s38, s34")
    e("s_mul_i32 s38, s38, 1280")
    e("v_lshlrev_b32 v6, 2, v2")
    XR = 24
    for q in range(5):
        e(f"buffer_load_dword v{XR+q}, v6, s[{sX}:{sX+3}], s38 offen offset:{256*q}")
    st()
    e("v_and_b32 v4, 15, v2")
    e("v_lshrrev_b32 v5, 4, v2")
    HM = 32
    e(f"s_mov_b32 s40, {f2u(1/2048):#x}")
    e(f"s_mov_b32 s41, {f2u(1/32**0.5):#x}")
    e("v_and_b32 v8, 7, v4")
    e("s_lshl_b32 s36, s35, 3")
    e("v_add_u32 v8, s36, v8")
    e("v_lshl_add_u32 v8, v8, 6, s34")
    e("v_cmp_lt_u32 vcc, 7, v4")
    T = 40
    for k in range(8):
        t, i = k >> 2, k & 3
        r = T + 3*k
        e(f"v_lshl_add_u32 v{r}, v5, 2, {16*t+i}")
        e(f"v_mul_u32_u24 v{r}, v{r}, v8")
        e(f"v_and_b32 v{r}, 2047, v{r}")
        e(f"v_cvt_f32_u32 v{r}, v{r}")
        e(f"v_mul_f32 v{r}, s40, v{r}")
        e(f"v_cos_f32 v{r+1}, v{r}")
        e(f"v_sin_f32 v{r+2}, v{r}")
    for k in range(8):
        r = T + 3*k
        e(f"v_mul_f32 v{r+1}, s41, v{r+1}")
        e(f"v_mul_f32 v{r+2}, s41, v{r+2}")
    for k in range(8):
        r = T + 3*k
        e(f"v_cvt_pk_f16_f32 v{r}, v{r+1}, -v{r+2}")
        e(f"v_cvt_pk_f16_f32 v{r+1}, v{r+2}, v{r+1}")
    for k in range(8):
        r = T + 3*k
        e(f"v_cndmask_b32 v{HM+k}, v{r}, v{r+1}, vcc")
    e("s_cmp_eq_u32 s33, 7")
    e(f"s_cbranch_scc0 {name}_nz")
    e("v_mul_u32_u24 v8, 21846, v2")
    e("v_lshrrev_b32 v8, 16, v8")
    e("v_mul_u32_u24 v9, 3, v8")
    e("v_sub_u32 v9, v2, v9")
    e("v_lshrrev_b32 v10, 1, v8")
    e(f"v_mul_u32_u24 v10, {YLP}, v10")
    e("v_and_b32 v8, 1, v8")
    e("v_mul_u32_u24 v8, 768, v8")
    e("v_add_u32 v10, v10, v8")
    e("v_lshl_add_u32 v10, v9, 5, v10")
    for k in range(4): e(f"v_mov_b32 v{12+k}, 0")
    e("v_cmp_gt_u32 vcc, 48, v2")
    e("s_and_saveexec_b64 s[42:43], vcc")
    e(f"ds_write_b128 v10, v[12:15] offset:{L_Y + 672}")
    e(f"ds_write_b128 v10, v[12:15] offset:{L_Y + 688}")
    e("s_mov_b64 exec, s[42:43]")
    e(f"{name}_nz:")
    e(f"v_mul_u32_u24 v8, {4*1408}, v5")
    e("v_lshl_add_u32 v8, v4, 2, v8")
    e("s_lshl_b32 s36, s33, 6")
    e(f"s_add_u32 s36, s36, {L_V}")
    e("v_add_u32 v8, s36, v8")
    e("v_and_b32 v9, 7, v4")
    e(f"v_mul_u32_u24 v9, {YLP}, v9")
    e("v_lshrrev_b32 v10, 3, v4")
    e("v_mul_u32_u24 v10, 768, v10")
    e("v_add_u32 v9, v9, v10")
    e("v_lshl_add_u32 v9, v5, 3, v9")
    e("s_lshl_b32 s36, s33, 5")
    e(f"s_add_u32 s36, s36, {L_Y}")
    e("v_add_u32 v9, s36, v9")
    st()
    e("s_waitcnt vmcnt(5) lgkmcnt(0)")
    e("s_barrier")
    st()
    VD = 40
    D = 64
    def rdA(tl):
        for k in range(8):
            e(f"ds_read_b32 v{VD+8*tl+k}, v8 offset:{(16*(k>>2)+(k&3))*1408 + 512*tl}")
    def mmA(tl):
        d = D + 4*tl
        e(f"v_mfma_f32_16x16x32_f16 v[{d}:{d+3}], v[{VD+8*tl}:{VD+8*tl+3}], v[{HM}:{HM+3}], 0")
        e(f"v_mfma_f32_16x16x32_f16 v[{d}:{d+3}], v[{VD+8*tl+4}:{VD+8*tl+7}], v[{HM+4}:{HM+7}], v[{d}:{d+3}]")
    def wrA(tl):
        d = D + 4*tl
        e(f"v_cvt_pk_f16_f32 v{d}, v{d}, v{d+1}")
        e(f"v_cvt_pk_f16_f32 v{d+1}, v{d+2}, v{d+3}")
        e(f"ds_write_b64 v9, v[{d}:{d+1}] offset:{256*tl}")
    CB = 96
    e("s_cmp_lt_u32 s33, 5")
    e(f"s_cbranch_scc0 {name}_a2")
    rdA(0); rdA(1); rdA(2)
    e("s_waitcnt lgkmcnt(8)")
    e("s_waitcnt lgkmcnt(8)")
    mmA(0); mmA(1)
    e("s_waitcnt lgkmcnt(0)")
    mmA(2)
    for i in range(8): e(f"ds_read_b128 v[{CB+4*i}:{CB+4*i+3}], v3 offset:{L_C + 1024*i}")
    wrA(0); wrA(1); wrA(2)
    e(f"s_branch {name}_a3")
    e(f"{name}_a2:")
    rdA(0); rdA(1)
    e("s_waitcnt lgkmcnt(0)")
    mmA(0); mmA(1)
    for i in range(8): e(f"ds_read_b128 v[{CB+4*i}:{CB+4*i+3}], v3 offset:{L_C + 1024*i}")
    e("s_nop 1")
    wrA(0); wrA(1)
    e(f"{name}_a3:")
    for i in range(8, 16): e(f"ds_read_b128 v[{CB+4*i}:{CB+4*i+3}], v3 offset:{L_C + 1024*i}")
    e("v_min_u32 v10, 2, v5")
    e("v_lshlrev_b32 v10, 2, v10")
    e("v_lshrrev_b32 v11, 2, v4")
    e("v_add_u32 v10, v10, v11")
    e("v_lshlrev_b32 v10, 6, v10")
    e("v_and_b32 v11, 3, v4")
    e("v_lshl_add_u32 v10, v11, 3, v10")
    e(f"s_mul_i32 s36, s33, {YLP}")
    e(f"s_add_u32 s36, s36, {L_Y}")
    e("v_add_u32 v10, s36, v10")
    e("v_mul_u32_u24 v11, 160, v5")
    e("v_lshl_add_u32 v11, v4, 1, v11")
    e(f"s_mul_i32 s36, s33, {YOP}")
    e(f"s_add_u32 s36, s36, {L_O}")
    e("v_add_u32 v11, s36, v11")
    e("v_add_u32 v7, s36, v6")
    e("s_waitcnt lgkmcnt(0)")
    e("s_barrier")
    st()
    AF = 40
    for mt in range(2):
        e(f"ds_read_b64_tr_b16 v[{AF+4*mt}:{AF+4*mt+1}], v10 offset:{32*mt}")
        e(f"ds_read_b64_tr_b16 v[{AF+4*mt+2}:{AF+4*mt+3}], v10 offset:{32*mt+768}")
    Z = 48
    e("s_waitcnt lgkmcnt(0)")
    for mt in range(2):
        for nt2 in range(2):
            for ri in range(2):
                d = Z + ((mt*2+nt2)*2+ri)*4; c = CB + (nt2*2+ri)*4
                e(f"v_mfma_f32_16x16x32_f16 v[{d}:{d+3}], v[{AF+4*mt}:{AF+4*mt+3}], v[{c}:{c+3}], 0")
    e("s_nop 4")
    TW = CB + 32
    BF = 80
    for mt in range(2):
        for nt2 in range(2):
            zr = Z + ((mt*2+nt2)*2)*4; zi = zr + 4
            for r in range(4):
                tc = TW + ((mt*2+nt2)*4+r)*2
                e(f"v_mul_f32 v{160+2*r}, v{zr+r}, v{tc}")
                e(f"v_mul_f32 v{161+2*r}, v{zr+r}, v{tc+1}")
            for r in range(4):
                tc = TW + ((mt*2+nt2)*4+r)*2
                e(f"v_fma_f32 v{160+2*r}, -v{zi+r}, v{tc+1}, v{160+2*r}")
                e(f"v_fmac_f32 v{161+2*r}, v{zi+r}, v{tc}")
            for r in range(4):
                e(f"v_cvt_pk_f16_f32 v{BF+(nt2*2+mt)*4+r}, v{160+2*r}, v{161+2*r}")
    e("s_nop 1")
    O = 48
    for nt2 in range(2):
        for mo in range(2):
            d = O + (nt2*2+mo)*4
            for mt in range(2):
                a = CB + 16 + (mo*2+mt)*4; b = BF + (nt2*2+mt)*4
                e(f"v_mfma_f32_16x16x32_f16 v[{d}:{d+3}], v[{a}:{a+3}], v[{b}:{b+3}], {'0' if mt == 0 else f'v[{d}:{d+3}]'}")
    e("v_cmp_gt_u32 vcc, 4, v4")
    e("v_mov_b32 v12, s46")
    e("s_nop 5")
    for k in range(16):
        e(f"v_mul_f32 v{O+k}, v{O+k}, v12")
    for nt2 in range(2):
        for mo in range(2):
            d = O + (nt2*2+mo)*4
            e(f"v_cvt_pk_bf16_f32 v{d}, v{d}, v{d+1}")
            e(f"v_cvt_pk_bf16_f32 v{d+2}, v{d+2}, v{d+3}")
    for nt2 in range(2):
        if nt2 == 1: e("s_and_saveexec_b64 s[42:43], vcc")
        for mo in range(2):
            d = O + (nt2*2+mo)*4
            for r in range(4):
                off = 40*(16*mo + r) + 32*nt2
                op = "ds_write_b16_d16_hi" if (r & 1) else "ds_write_b16"
                e(f"{op} v11, v{d + (r & 2)} offset:{off}")
    e("s_mov_b64 exec, s[42:43]")
    YR = 32
    e("s_waitcnt lgkmcnt(0)")
    st()
    for q in range(5):
        e(f"ds_read_b32 v{YR+q}, v7 offset:{256*q}")
    e("s_mov_b32 s49, 0xffff0000")
    e("s_waitcnt vmcnt(0) lgkmcnt(0)")
    H = 40
    for i in range(5):
        e(f"v_lshlrev_b32 v{H+2*i}, 16, v{XR+i}")
        e(f"v_and_b32 v{H+2*i+1}, s49, v{XR+i}")
        e(f"v_lshlrev_b32 v{XR+i}, 16, v{YR+i}")
        e(f"v_and_b32 v{YR+i}, s49, v{YR+i}")
    for i in range(5):
        e(f"v_add_f32 v{H+2*i}, v{H+2*i}, v{XR+i}")
        e(f"v_add_f32 v{H+2*i+1}, v{H+2*i+1}, v{YR+i}")
    for i in range(5):
        e(f"v_cvt_pk_bf16_f32 v{XR+i}, v{H+2*i}, v{H+2*i+1}")
    for q in range(5):
        e(f"buffer_store_dword v{XR+q}, v6, s[{sH}:{sH+3}], s38 offen offset:{256*q} sc1")
    for i in range(5):
        e(f"v_lshlrev_b32 v{H+2*i}, 16, v{XR+i}")
        e(f"v_and_b32 v{H+2*i+1}, s49, v{XR+i}")
    ln_rows(e, H, 1, 10, 56, 49)
    for i in range(5):
        e(f"v_cvt_pk_bf16_f32 v{YR+i}, v{H+2*i}, v{H+2*i+1}")
    for q in range(5):
        e(f"buffer_store_dword v{YR+q}, v6, s[{sL}:{sL+3}], s38 offen offset:{256*q} sc1")
    st()
    if stamps: e("s_waitcnt vmcnt(0)")
    st(); st(True)
    st.dump(name)
    e(f"{name}_END:")
    e("s_endpgm")
    return name, 168
```

```python
from fw import *
def gen_repack4(e, lbl, swg, ldsbase=0):
    e(f"{lbl}:")
    e("s_load_dwordx4 s[4:7], s[0:1], 32")
    e("s_load_dwordx2 s[8:9], s[0:1], 48")
    e("s_load_dwordx2 s[10:11], s[0:1], 72")
    e("v_lshrrev_b32 v1, 6, v0")
    e("v_and_b32 v2, 63, v0")
    e("s_nop 0")
    e("v_readfirstlane_b32 s33, v1")
    e(f"s_lshl_b32 s34, s{swg}, 2")
    e("s_add_u32 s34, s34, s33")
    e("s_cmp_ge_u32 s34, 960")
    e(f"s_cbranch_scc1 {lbl}_down")
    e("s_cmp_ge_u32 s34, 480")
    e("s_cselect_b32 s35, 1, 0")
    e("s_mul_i32 s36, s35, 480")
    e("s_sub_u32 s34, s34, s36")
    e("s_mul_i32 s36, s34, 2731")
    e("s_lshr_b32 s36, s36, 16")
    e("s_mul_i32 s37, s36, 24")
    e("s_sub_u32 s37, s34, s37")
    e("s_waitcnt lgkmcnt(0)")
    e("s_cmp_eq_u32 s35, 0")
    e("s_cselect_b32 s12, s4, s6")
    e("s_cselect_b32 s13, s5, s7")
    e(f"s_mov_b32 s14, {640*3072}")
    e("s_mov_b32 s15, 0x00020000")
    srd(e, 16, 10, WS_PG, PG_BYTES)
    e("s_mov_b32 s38, 3072")
    e("s_mov_b32 s46, 512")
    e("s_mov_b32 s47, 3")
    for i in range(4):
        e(f"s_lshl_b32 s40, s37, 2")
        e(f"s_add_u32 s40, s40, {i}")
        e("s_mul_i32 s41, s40, 10923")
        e("s_lshr_b32 s41, s41, 16")
        e("s_mul_i32 s42, s41, 6")
        e("s_sub_u32 s42, s40, s42")
        e("s_mul_i32 s41, s41, 10")
        e("s_lshr_b32 s43, s36, 1")
        e("s_add_u32 s41, s41, s43")
        e("s_lshl_b32 s41, s41, 1")
        e("s_add_u32 s41, s41, s35")
        e("s_lshl_b32 s41, s41, 1")
        e("s_and_b32 s43, s36, 1")
        e("s_add_u32 s41, s41, s43")
        e("s_mul_i32 s41, s41, 6")
        e("s_add_u32 s41, s41, s42")
        e(f"s_lshl_b32 s{50+i}, s41, 10")
    e(f"s_branch {lbl}_go")
    e(f"{lbl}_down:")
    e("s_sub_u32 s34, s34, 960")
    e("s_mul_i32 s36, s34, 6554")
    e("s_lshr_b32 s36, s36, 16")
    e("s_mul_i32 s37, s36, 10")
    e("s_sub_u32 s37, s34, s37")
    e("s_waitcnt lgkmcnt(0)")
    e("s_mov_b32 s12, s8")
    e("s_mov_b32 s13, s9")
    e(f"s_mov_b32 s14, {1536*1280}")
    e("s_mov_b32 s15, 0x00020000")
    srd(e, 16, 10, WS_PD, PD_BYTES)
    e("s_mov_b32 s38, 1280")
    e("s_mov_b32 s46, 2048")
    e("s_mov_b32 s47, 2")
    for i in range(4):
        e(f"s_lshl_b32 s40, s37, 2")
        e(f"s_add_u32 s40, s40, {i}")
        e("s_mul_i32 s41, s40, 13108")
        e("s_lshr_b32 s41, s41, 16")
        e("s_mul_i32 s42, s41, 5")
        e("s_sub_u32 s42, s40, s42")
        e("s_mul_i32 s41, s41, 48")
        e("s_add_u32 s41, s41, s36")
        e("s_mul_i32 s41, s41, 5")
        e("s_add_u32 s41, s41, s42")
        e(f"s_lshl_b32 s{50+i}, s41, 10")
    e(f"{lbl}_go:")
    e("v_lshrrev_b32 v3, 3, v2")
    e("v_mul_lo_u32 v3, v3, s38")
    e("v_and_b32 v4, 7, v2")
    e("v_lshl_add_u32 v3, v4, 4, v3")
    e("s_lshl_b32 s40, s36, 5")
    e("s_mul_i32 s40, s40, s38")
    e("s_lshl_b32 s41, s37, 7")
    e("s_add_u32 s40, s40, s41")
    e("s_lshl_b32 s41, s38, 3")
    e("s_lshl_b32 s42, s33, 12")
    if ldsbase: e(f"s_add_u32 s42, s42, {ldsbase}")
    for j in range(4):
        e(f"s_add_u32 m0, s42, {1024*j}")
        e("s_nop 0")
        e(f"buffer_load_dwordx4 v3, s[12:15], s40 offen lds")
        if j < 3: e("s_add_u32 s40, s40, s41")
    e("v_and_b32 v4, 15, v2")
    e("v_lshrrev_b32 v5, 4, v2")
    e("v_lshlrev_b32 v5, s47, v5")
    e("v_lshrrev_b32 v6, 2, v4")
    e("v_add_u32 v5, v5, v6")
    e("v_lshlrev_b32 v5, 7, v5")
    e("v_and_b32 v6, 3, v4")
    e("v_lshl_add_u32 v5, v6, 3, v5")
    e("v_add_u32 v5, s42, v5")
    e("v_add_u32 v6, s46, v5")
    e("v_lshlrev_b32 v7, 4, v2")
    e("s_waitcnt vmcnt(0)")
    for i in range(4):
        e(f"ds_read_b64_tr_b16 v[{8+4*i}:{9+4*i}], v5 offset:{32*i}")
        e(f"ds_read_b64_tr_b16 v[{10+4*i}:{11+4*i}], v6 offset:{32*i}")
    for i in range(4):
        e(f"s_waitcnt lgkmcnt({6-2*i})")
        e(f"buffer_store_dwordx4 v[{8+4*i}:{11+4*i}], v7, s[16:19], s{50+i} offen")
    e("s_endpgm")
```

```python
from fw import *
import k1v2, k2v2, k3h, k4v4, k5v3
from k1 import PITCH
from tables import *
import sys
def build(out):
    e = Asm()
    ref = open("sequential_preLN__spectral_gfnet__geglu_ffn__prompt.s.ref").read()
    head = "".join(l + "\n" for l in ref.split("\n") if l.startswith(";") and "@launch" not in l)
    hdr = head + f"""; @launch kernel=k1_kernel grid=(212,1,1) block=(512,1,1) lds={32*PITCH}
; @launch kernel=k2_kernel grid=(528,1,1) block=(256,1,1) lds=24576
; @launch kernel=k3_kernel grid=(256,1,1) block=(512,1,1) lds={k3h.K3H_LDS}
; @launch kernel=k4_kernel grid=(256,1,1) block=(512,1,1) lds=122880
; @launch kernel=k5_kernel grid=(256,1,1) block=(256,1,1) lds=81920
.amdgcn_target "amdgcn-amd-amdhsa--gfx950"
.text
"""
    ks = [k1v2.gen_k1(e), k2v2.gen_k2(e), k3h.gen_k3(e), k4v4.gen_k4(e), k5v3.gen_k5(e)]
    txt = hdr + e.text() + '.section .rodata,"a"\n' + "".join(kd(n, v) for n, v in ks) + emit_data("g64tab", g64_table()) + emit_data("rowtab", row_tables()) + emit_data("k3tab", k3_table())
    open(out, "w").write(txt)
if __name__ == "__main__":
    build(sys.argv[1] if len(sys.argv) > 1 else "a_v6.s")
```

```python
from fw import *
from k2 import table_srd
from k1 import gmat, f2u, PITCH
from tables import NSTEP
from side import gen_repack2
from k2v3 import gen_wmax

def row16_sum(e, r):
    for sh in (8, 4, 2, 1):
        e("s_nop 1")
        e(f"v_add_f32_dpp v{r}, v{r}, v{r} row_ror:{sh} row_mask:0xf bank_mask:0xf")

def ln16(e0, X, n, T, S, hook=None):
    cnt = [0]
    def e(x):
        e0(x)
        cnt[0] += 1
        if hook and cnt[0] % 16 == 0: hook()
    A, B, C, D4 = T, T+1, T+2, T+3
    for k in range(4):
        e(f"v_add_f32 v{T+k}, v{X+k}, v{X+4+k}")
    for i in range(8, n, 4):
        for k in range(4):
            e(f"v_add_f32 v{T+k}, v{T+k}, v{X+i+k}")
    e(f"v_add_f32 v{A}, v{A}, v{B}")
    e(f"v_add_f32 v{C}, v{C}, v{D4}")
    e(f"v_add_f32 v{A}, v{A}, v{C}")
    row16_sum(e, A)
    e(f"s_mov_b32 s82, {f2u(1/640):#x}")
    e(f"s_mov_b32 s83, {f2u(1e-5):#x}")
    MB, DM = T+4, T+5
    e(f"v_mul_f32 v{A}, s82, v{A}")
    e(f"v_cvt_pk_bf16_f32 v{MB}, v{A}, v{A}")
    e(f"v_and_b32 v{MB}, v{S}, v{MB}")
    e(f"v_sub_f32 v{DM}, v{A}, v{MB}")
    for i in range(n):
        e(f"v_sub_f32 v{X+i}, v{X+i}, v{MB}")
    for k in range(4):
        e(f"v_mul_f32 v{T+k}, v{X+k}, v{X+k}")
    for i in range(4, n, 4):
        for k in range(4):
            e(f"v_fmac_f32 v{T+k}, v{X+i+k}, v{X+i+k}")
    e(f"v_add_f32 v{A}, v{A}, v{B}")
    e(f"v_add_f32 v{C}, v{C}, v{D4}")
    e(f"v_add_f32 v{A}, v{A}, v{C}")
    row16_sum(e, A)
    e(f"v_mul_f32 v{A}, s82, v{A}")
    e(f"v_fma_f32 v{A}, -v{DM}, v{DM}, v{A}")
    e(f"v_max_f32 v{A}, 0, v{A}")
    e(f"v_cvt_pk_bf16_f32 v{A}, v{A}, v{A}")
    e(f"v_and_b32 v{A}, v{S}, v{A}")
    e(f"v_add_f32 v{A}, s83, v{A}")
    e(f"v_cvt_pk_bf16_f32 v{A}, v{A}, v{A}")
    e(f"v_and_b32 v{A}, v{S}, v{A}")
    e(f"v_sqrt_f32 v{A}, v{A}")
    for i in range(0, n, 2):
        e(f"v_cvt_pk_bf16_f32 v{X+i}, v{X+i}, v{X+i+1}")
    e(f"v_cvt_pk_bf16_f32 v{A}, v{A}, v{A}")
    e(f"v_and_b32 v{A}, v{S}, v{A}")
    e(f"v_rcp_f32 v{A}, v{A}")
    for i in range(0, n, 2):
        e(f"v_and_b32 v{X+i+1}, v{S}, v{X+i}")
        e(f"v_lshlrev_b32 v{X+i}, 16, v{X+i}")
    for i in range(n):
        e(f"v_mul_f32 v{X+i}, v{X+i}, v{A}")
    for i in range(0, n, 2):
        e(f"v_cvt_pk_bf16_f32 v{X+i}, v{X+i}, v{X+i+1}")
    for i in range(0, n, 2):
        e(f"v_and_b32 v{X+i+1}, v{S}, v{X+i}")
        e(f"v_lshlrev_b32 v{X+i}, 16, v{X+i}")

def gen_k1(e, name="k1_kernel", stamps=False, side=True):
    st = Stamps(e, base=60, on=stamps)
    kernel_head(e, name)
    sX, sU, sT = 12, 16, 20
    e(f"s_cmp_ge_u32 s2, {204 if side else 128}")
    e(f"s_cbranch_scc1 {name}_END")
    if side:
        e("s_cmp_ge_u32 s2, 128")
        e(f"s_cbranch_scc1 {name}_RP")
    st(); st(True)
    e("s_load_dwordx2 s[4:5], s[0:1], 0")
    e("s_load_dwordx2 s[8:9], s[0:1], 72")
    table_srd(e, sT, "rowtab", 11*21504)
    e("v_lshrrev_b32 v1, 6, v0")
    e("v_and_b32 v2, 63, v0")
    e("s_and_b32 s30, s2, 63")
    e("s_lshr_b32 s31, s2, 6")
    e("v_readfirstlane_b32 s33, v1")
    e("v_and_b32 v4, 15, v2")
    e("v_lshrrev_b32 v5, 4, v2")
    e("s_mul_i32 s34, s31, 6")
    e("s_add_u32 s34, s34, s33")
    e("s_cmp_lt_u32 s33, 6")
    e("s_cselect_b32 s35, 1, 0")
    e("s_cmp_lt_u32 s34, 11")
    e("s_cselect_b32 s35, s35, 0")
    e("s_lshl_b32 s36, s33, 8")
    e("s_add_u32 s36, s36, s30")
    e("v_lshl_add_u32 v6, v5, 6, s36")
    e("v_mul_u32_u24 v6, 1280, v6")
    e("v_lshlrev_b32 v7, 3, v4")
    e("v_sub_u32 v8, v6, v7")
    e("v_add_u32 v8, 760, v8")
    e("v_add_u32 v6, v6, v7")
    e("s_waitcnt lgkmcnt(0)")
    srd(e, sX, 4, 0, H_BYTES)
    RAW = 96
    for q in range(5):
        e(f"buffer_load_dwordx2 v[{RAW+2*q}:{RAW+2*q+1}], v6, s[{sX}:{sX+3}], 0 offen offset:{128*q}")
        e(f"buffer_load_dwordx2 v[{RAW+10+2*q}:{RAW+11+2*q}], v8, s[{sX}:{sX+3}], 0 offen offset:{128*(4-q)}")
    srd(e, sU, 8, WS_U, U_BYTES)
    st()
    TB = 128; G = 64
    e("v_lshlrev_b32 v3, 4, v2")
    e("s_mul_i32 s36, s34, 21504")
    e("s_cmp_eq_u32 s35, 0")
    e("s_cselect_b32 s36, 0x80000000, s36")
    e(f"s_cbranch_scc1 {name}_ln")
    gmat(e, G, 16, 30, False)
    e(f"{name}_ln:")
    for i in range(1, 6): e(f"s_add_u32 s{50+i}, s36, {4096*i}")
    e("s_mov_b32 s50, s36")
    tl = [0]
    def hook():
        i = tl[0]
        if i < 21:
            e(f"buffer_load_dwordx4 v[{TB+4*i}:{TB+4*i+3}], v3, s[{sT}:{sT+3}], s{50+i//4} offen offset:{1024*(i%4)}")
            tl[0] += 1
    e("v_mov_b32 v9, 0xffff0000")
    e("s_waitcnt vmcnt(0)")
    st()
    X = 16
    for k in range(20):
        e(f"v_lshlrev_b32 v{X+2*k}, 16, v{RAW+k}")
        e(f"v_and_b32 v{X+2*k+1}, v9, v{RAW+k}")
    ln16(e, X, 40, 56, 9, hook)
    while tl[0] < 21: hook()
    R = 96
    for q in range(5):
        e(f"v_mov_b32_dpp v{R+q}, v{X+20+4*q} row_ror:1 row_mask:0xf bank_mask:0xf")
    e("s_lshl_b32 s36, s33, 2")
    e("v_add_u32 v10, s36, v5")
    e(f"v_mul_u32_u24 v10, {PITCH}, v10")
    e("v_lshl_add_u32 v10, v4, 2, v10")
    e(f"v_mov_b32 v{R+6}, 0")
    e(f"v_mov_b32 v{R+7}, v{X}")
    e("s_mov_b32 s42, 0x00010001")
    e("s_mov_b32 s43, 0x00010001")
    e("s_mov_b64 exec, s[42:43]")
    e(f"v_mov_b32 v{R+6}, v{R+4}")
    for q in range(4, 0, -1):
        e(f"v_mov_b32 v{R+q}, v{R+q-1}")
    e(f"v_mov_b32 v{R}, 0")
    e(f"v_mov_b32 v{R+7}, 0")
    e("s_mov_b64 exec, -1")
    e(f"v_cvt_pk_f16_f32 v{R+6}, v{R+6}, 0")
    e(f"ds_write_b32 v10, v{R+6} offset:320")
    W = 104
    for q in range(5):
        lo = [X+4*q+j for j in range(4)]
        mi = [R+q, X+20+4*q+3, X+20+4*q+2, X+20+4*q+1]
        for j in range(4):
            e(f"v_add_f32 v{W+j}, v{lo[j]}, v{mi[j]}")
            e(f"v_sub_f32 v{W+4+j}, v{R+7 if (q == 0 and j == 0) else lo[j]}, v{mi[j]}")
        e(f"v_cvt_pk_f16_f32 v{W+8}, v{W}, v{W+2}")
        e(f"v_cvt_pk_f16_f32 v{W+9}, v{W+1}, v{W+3}")
        e(f"v_cvt_pk_f16_f32 v{W+10}, v{W+4}, v{W+6}")
        e(f"v_cvt_pk_f16_f32 v{W+11}, v{W+5}, v{W+7}")
        for k in range(4):
            e(f"ds_write_b32 v10, v{W+8+k} offset:{64*q + 384*k}")
        W = 116 if W == 104 else 104
    st()
    e("s_waitcnt lgkmcnt(0)")
    e("s_barrier")
    st()
    e("s_cmp_eq_u32 s35, 0")
    e(f"s_cbranch_scc1 {name}_END")
    e(f"v_mul_u32_u24 v10, {PITCH}, v4")
    e("v_lshl_add_u32 v10, v5, 4, v10")
    D = 16; AF = 96
    seq = [(g, t, mi) for g in range(4) for t in range(NSTEP[g]) for mi in range(2)]
    tb_index = {}; k = 0
    for g in range(4):
        for t in range(NSTEP[g]):
            tb_index[(g, t)] = k; k += 1
    NB = 8
    def rd(i):
        g, t, mi = seq[i]
        a = AF + 4*(i % NB)
        e(f"ds_read_b128 v[{a}:{a+3}], v10 offset:{mi*16*PITCH + g*384 + 64*t}")
    for i in range(NB): rd(i)
    e("s_waitcnt vmcnt(0)")
    for i, (g, t, mi) in enumerate(seq):
        rem = min(NB - 1, len(seq) - 1 - i)
        e(f"s_waitcnt lgkmcnt({rem})")
        a = AF + 4*(i % NB); d = D + (g*2+mi)*4; tb = TB + 4*tb_index[(g, t)]
        e(f"v_mfma_f32_16x16x32_f16 v[{d}:{d+3}], v[{a}:{a+3}], v[{tb}:{tb+3}], {'0' if t == 0 else f'v[{d}:{d+3}]'}")
        if i + NB < len(seq): rd(i + NB)
    e("s_lshl_b32 s36, s34, 4")
    e("v_add_u32 v11, s36, v4")
    e("v_lshl_add_u32 v12, v5, 8, s30")
    e("v_mul_u32_u24 v12, 1408, v12")
    e("v_lshl_add_u32 v13, v11, 2, v12")
    e("v_sub_u32 v14, 320, v11")
    e("v_lshl_add_u32 v14, v14, 2, v12")
    e("v_cmp_lt_u32 vcc, 160, v11")
    e("v_mov_b32 v15, 0x80000000")
    e("v_cndmask_b32 v13, v13, v15, vcc")
    e("v_cndmask_b32 v14, v14, v15, vcc")
    st()
    BK, BM = 48, 56
    for mi in range(2):
        for r in range(4):
            ce, co, se, so = (D + (g*2+mi)*4 + r for g in range(4))
            t = 96 + 4*r
            e(f"v_add_f32 v{t}, v{ce}, v{co}")
            e(f"v_sub_f32 v{t+1}, v{ce}, v{co}")
            e(f"v_add_f32 v{t+2}, v{se}, v{so}")
            e(f"v_sub_f32 v{t+3}, v{se}, v{so}")
        for r in range(4):
            t = 96 + 4*r
            e(f"v_cvt_pk_f16_f32 v{BK+4*mi+r}, v{t}, -v{t+2}")
            e(f"v_cvt_pk_f16_f32 v{BM+4*mi+r}, v{t+1}, v{t+3}")
    e("s_nop 1")
    O = 128
    for col, B in enumerate((BK, BM)):
        for mo in range(2):
            for ri in range(2):
                d = O + ((col*2+mo)*2+ri)*4
                for mi in range(2):
                    g = G + ((mo*2+ri)*2+mi)*4
                    e(f"v_mfma_f32_16x16x32_f16 v[{d}:{d+3}], v[{g}:{g+3}], v[{B+4*mi}:{B+4*mi+3}], {'0' if mi == 0 else f'v[{d}:{d+3}]'}")
    for k in range(8):
        e(f"s_mov_b32 s{44+k}, {(16*(k>>2)+(k&3))*64*1408}")
    for col in range(2):
        if col == 1: e("s_nop 3")
        for mo in range(2):
            for r in range(4):
                dr = O + ((col*2+mo)*2+0)*4 + r; di = O + ((col*2+mo)*2+1)*4 + r
                e(f"v_cvt_pk_f16_f32 v{dr}, v{dr}, v{di}")
                e(f"buffer_store_dword v{dr}, v{13+col}, s[{sU}:{sU+3}], s{44+4*mo+r} offen")
    st()
    if stamps: e("s_waitcnt vmcnt(0)")
    st(); st(True)
    st.dump(name)
    e(f"{name}_END:")
    e("s_endpgm")
    if side:
        e(f"{name}_RP:")
        e("s_cmp_ge_u32 s2, 144")
        e(f"s_cbranch_scc1 {name}_RP2")
        e("s_sub_u32 s3, s2, 128")
        gen_wmax(e, f"{name}_rpj", 3)
        e(f"{name}_RP2:")
        e("s_sub_u32 s3, s2, 144")
        gen_repack2(e, f"{name}_rpk", 3)
    return name, 212
```

```python
from fw import *
from k2 import table_srd
from repack4 import gen_repack4

def task_decode(e, stask, sa, stile):
    e(f"s_mul_i32 s{sa}, s{stask}, 3121")
    e(f"s_lshr_b32 s{sa}, s{sa}, 16")
    e(f"s_mul_i32 s{stile}, s{sa}, 21")
    e(f"s_sub_u32 s{stile}, s{stask}, s{stile}")

def gen_wprep(e, lbl, swg):
    e(f"{lbl}:")
    e("s_load_dwordx4 s[4:7], s[0:1], 8")
    e("s_load_dwordx2 s[8:9], s[0:1], 72")
    e("v_lshrrev_b32 v1, 6, v0")
    e("v_and_b32 v2, 63, v0")
    e("s_nop 0")
    e("v_readfirstlane_b32 s33, v1")
    e(f"s_lshl_b32 s38, s{swg}, 3")
    e("s_add_u32 s38, s38, s33")
    task_decode(e, 38, 39, 40)
    e("v_and_b32 v4, 15, v2")
    e("v_lshrrev_b32 v5, 4, v2")
    e("s_lshl_b32 s41, s40, 4")
    e("v_add_u32 v6, s41, v4")
    e("v_lshl_add_u32 v8, v5, 7, s39")
    e("v_mul_u32_u24 v8, 642, v8")
    e("v_lshl_add_u32 v8, v6, 1, v8")
    e("v_cmp_lt_u32 vcc, 320, v6")
    e("v_mov_b32 v10, 0x80000000")
    e("v_cndmask_b32 v8, v8, v10, vcc")
    e("s_waitcnt lgkmcnt(0)")
    srd(e, 12, 4, 0, 2048*642)
    srd(e, 16, 6, 0, 2048*642)
    srd(e, 20, 8, WS_WP, WP_BYTES)
    srd(e, 24, 8, WS_WMAX, 4096)
    for i in range(16):
        e(f"s_mov_b32 s42, {(16*(i>>2)+(i&3))*32*642}")
        e(f"buffer_load_ushort v{16+i}, v8, s[12:15], s42 offen")
        e(f"buffer_load_ushort v{32+i}, v8, s[16:19], s42 offen")
    e("v_lshlrev_b32 v3, 4, v2")
    e("s_lshl_b32 s42, s38, 12")
    e("v_mov_b32 v11, 0x7fff7fff")
    e("s_waitcnt vmcnt(0)")
    for i in range(16):
        e(f"v_lshl_or_b32 v{16+i}, v{32+i}, 16, v{16+i}")
    for i in range(4):
        e(f"buffer_store_dwordx4 v[{16+4*i}:{19+4*i}], v3, s[20:23], s42 offen offset:{1024*i}")
    for i in range(16):
        e(f"v_and_b32 v{32+i}, v11, v{16+i}")
    for i in range(1, 16):
        e(f"v_pk_max_u16 v32, v32, v{32+i}")
    e("v_lshrrev_b32 v33, 16, v32")
    e("v_and_b32 v32, 0xffff, v32")
    e("v_max_u32 v32, v32, v33")
    for sh in (8, 4, 2, 1):
        e("s_nop 1")
        e(f"v_max_u32_dpp v32, v32, v32 row_ror:{sh} row_mask:0xf bank_mask:0xf")
    for op in ("v_permlane16_swap_b32", "v_permlane32_swap_b32"):
        e("v_mov_b32 v33, v32")
        e("s_nop 1")
        e(f"{op} v33, v32")
        e("s_nop 0")
        e("v_max_u32 v32, v32, v33")
    e("s_lshl_b32 s42, s38, 2")
    e("v_mov_b32 v12, 0")
    e("s_mov_b64 exec, 1")
    e("buffer_store_dword v32, v12, s[24:27], s42 offen")
    e("s_endpgm")

def gen_k2(e, name="k2_kernel", stamps=False, side=True):
    st = Stamps(e, base=76, on=stamps)
    kernel_head(e, name)
    sU, sV, sW, sM, sT = 12, 16, 20, 24, 28
    e(f"s_cmp_ge_u32 s2, {168+360 if side else 168}")
    e(f"s_cbranch_scc1 {name}_END")
    if side:
        e("s_cmp_ge_u32 s2, 168")
        e(f"s_cbranch_scc1 {name}_RP")
    st(); st(True)
    e("s_load_dwordx2 s[8:9], s[0:1], 72")
    table_srd(e, sT, "g64tab", 24576)
    e("v_lshrrev_b32 v1, 6, v0")
    e("v_and_b32 v2, 63, v0")
    e("v_lshlrev_b32 v3, 4, v2")
    e("v_readfirstlane_b32 s37, v1")
    e("s_mul_i32 s36, s37, 6144")
    for j in range(6):
        e(f"s_add_u32 m0, s36, {1024*j}")
        e(f"s_add_u32 s38, s36, {1024*j}")
        e(f"buffer_load_dwordx4 v3, s[{sT}:{sT+3}], s38 offen lds")
    e("s_lshl_b32 s38, s2, 2")
    e("s_add_u32 s38, s38, s37")
    task_decode(e, 38, 39, 40)
    e("v_and_b32 v4, 15, v2")
    e("v_lshrrev_b32 v5, 4, v2")
    e("s_lshl_b32 s41, s40, 4")
    e("v_add_u32 v6, s41, v4")
    e("s_lshl_b32 s41, s39, 6")
    e("v_lshl_add_u32 v7, v5, 2, s41")
    e("v_mul_u32_u24 v7, 1408, v7")
    e("v_lshl_add_u32 v7, v6, 2, v7")
    e("v_cmp_lt_u32 vcc, 320, v6")
    e("v_mov_b32 v10, 0x80000000")
    e("v_cndmask_b32 v9, v7, v10, vcc")
    SO_U = 44
    for i in range(16):
        e(f"s_mov_b32 s{SO_U+i}, {(16*(i>>2)+(i&3))*1408}")
    e("s_waitcnt lgkmcnt(0)")
    srd(e, sU, 8, WS_U, U_BYTES)
    UD = 16
    for i in range(16):
        e(f"buffer_load_dword v{UD+i}, v9, s[{sU}:{sU+3}], s{SO_U+i} offen")
    srd(e, sW, 8, WS_WP, WP_BYTES)
    srd(e, sM, 8, WS_WMAX, 224*4)
    WP = 32
    e("s_lshl_b32 s42, s38, 12")
    for i in range(4):
        e(f"buffer_load_dwordx4 v[{WP+4*i}:{WP+4*i+3}], v3, s[{sW}:{sW+3}], s42 offen offset:{1024*i}")
    MX = 48
    e(f"buffer_load_dwordx4 v[{MX}:{MX+3}], v3, s[{sM}:{sM+3}], 0 offen")
    srd(e, sV, 8, WS_V, U_BYTES)
    st()
    e("v_mov_b32 v11, 2.0")
    e("v_cmp_eq_u32 vcc, 0, v6")
    e("v_cmp_eq_u32 s[60:61], 320, v6") if False else None
    e("s_nop 1")
    e("v_cndmask_b32 v11, v11, 1.0, vcc")
    e("v_cmp_eq_u32 vcc, 320, v6")
    e("s_nop 1")
    e("v_cndmask_b32 v11, v11, 1.0, vcc")
    e("s_mov_b32 s42, 0x05040100")
    e("s_mov_b32 s43, 0x07060302")
    e("s_waitcnt vmcnt(21)")
    e("s_barrier")
    C = 128
    for i in range(24):
        e(f"ds_read_b128 v[{C+4*i}:{C+4*i+3}], v3 offset:{1024*i}")
    BR, BI = 64, 72
    e("s_waitcnt vmcnt(5)")
    st()
    for i in range(8):
        e(f"v_perm_b32 v{BR+i}, v{UD+2*i+1}, v{UD+2*i}, s42")
        e(f"v_perm_b32 v{BI+i}, v{UD+2*i+1}, v{UD+2*i}, s43")
    DR, DI = 80, 96
    def cf(mat, mt4, t):
        b = C + 4 * ((mat * 4 + mt4) * 2 + t); return f"v[{b}:{b+3}]"
    def dft(inv):
        for mt4 in range(4):
            dr = f"v[{DR+4*mt4}:{DR+4*mt4+3}]"; di = f"v[{DI+4*mt4}:{DI+4*mt4+3}]"
            m_ri = 1 if inv else 2
            m_ir = 2 if inv else 1
            for t in range(2):
                br = f"v[{BR+4*t}:{BR+4*t+3}]"; bi = f"v[{BI+4*t}:{BI+4*t+3}]"
                e(f"v_mfma_f32_16x16x32_f16 {dr}, {cf(0,mt4,t)}, {br}, {dr if t else 0}")
                e(f"v_mfma_f32_16x16x32_f16 {di}, {cf(m_ir,mt4,t)}, {br}, {di if t else 0}")
                e(f"v_mfma_f32_16x16x32_f16 {dr}, {cf(m_ri,mt4,t)}, {bi}, {dr}")
                e(f"v_mfma_f32_16x16x32_f16 {di}, {cf(0,mt4,t)}, {bi}, {di}")
    e("s_waitcnt lgkmcnt(0)")
    dft(False)
    e("s_waitcnt vmcnt(0)")
    for i in range(1, 4):
        e(f"v_max_u32 v{MX}, v{MX}, v{MX+i}")
    for sh in (8, 4, 2, 1):
        e("s_nop 1")
        e(f"v_max_u32_dpp v{MX}, v{MX}, v{MX} row_ror:{sh} row_mask:0xf bank_mask:0xf")
    for op in ("v_permlane16_swap_b32", "v_permlane32_swap_b32"):
        e(f"v_mov_b32 v{MX+1}, v{MX}")
        e("s_nop 1")
        e(f"{op} v{MX+1}, v{MX}")
        e("s_nop 0")
        e(f"v_max_u32 v{MX}, v{MX}, v{MX+1}")
    e(f"v_lshrrev_b32 v{MX}, 7, v{MX}")
    e(f"v_max_u32 v{MX}, 1, v{MX}")
    e(f"v_min_u32 v{MX}, 253, v{MX}")
    e(f"v_sub_u32 v{MX+1}, 254, v{MX}")
    e(f"v_lshlrev_b32 v{MX+1}, 23, v{MX+1}")
    e(f"v_lshlrev_b32 v{MX}, 23, v{MX}")
    e(f"v_mul_f32 v11, v11, v{MX+1}")
    e("s_cmp_lg_u32 s38, 0")
    e(f"s_cbranch_scc1 {name}_nosc")
    srd(e, sM, 8, WS_SC, 4)
    e("v_mov_b32 v12, 0")
    e("s_mov_b64 exec, 1")
    e(f"buffer_store_dword v{MX}, v12, s[{sM}:{sM+3}], 0 offen")
    e("s_mov_b64 exec, -1")
    e(f"{name}_nosc:")
    e("v_mov_b32 v12, 0xffff0000")
    WR, WI = 48, 112
    for i in range(16):
        e(f"v_lshlrev_b32 v{WR+i if i else 13}, 16, v{WP+i}")
        e(f"v_and_b32 v{WI+i}, v12, v{WP+i}")
    e(f"v_mov_b32 v{WR}, v13")
    for i in range(16):
        e(f"v_mul_f32 v{WR+i}, v11, v{WR+i}")
        e(f"v_mul_f32 v{WI+i}, v11, v{WI+i}")
    YR, YI = 16, 32
    for i in range(16):
        e(f"v_mul_f32 v{YR+i}, v{DR+i}, v{WR+i}")
        e(f"v_mul_f32 v{YI+i}, v{DR+i}, v{WI+i}")
    for i in range(16):
        e(f"v_fma_f32 v{YR+i}, -v{DI+i}, v{WI+i}, v{YR+i}")
        e(f"v_fmac_f32 v{YI+i}, v{DI+i}, v{WR+i}")
    for i in range(8):
        e(f"v_cvt_pk_f16_f32 v{BR+i}, v{YR+2*i}, v{YR+2*i+1}")
        e(f"v_cvt_pk_f16_f32 v{BI+i}, v{YI+2*i}, v{YI+2*i+1}")
    e("s_nop 1")
    st()
    dft(True)
    e("s_nop 7")
    for i in range(16):
        e(f"v_cvt_pk_f16_f32 v{UD+i}, v{DR+i}, v{DI+i}")
        e(f"buffer_store_dword v{UD+i}, v7, s[{sV}:{sV+3}], s{SO_U+i} offen")
    st()
    if stamps: e("s_waitcnt vmcnt(0)")
    st(); st(True)
    st.dump(name)
    e(f"{name}_END:")
    e("s_endpgm")
    if side:
        e(f"{name}_RP:")
        e("s_sub_u32 s3, s2, 168")
        gen_repack4(e, f"{name}_rpj", 3)
    return name, 224
```

```python
from fw import *
from k2 import table_srd
L2_C = 0; L2_W = 24576; L2_U = 24576 + 16384; K2_LDS = L2_U + 16384

def gen_wmax(e, lbl, swg):
    e(f"{lbl}:")
    e("s_load_dwordx4 s[4:7], s[0:1], 8")
    e("s_load_dwordx2 s[8:9], s[0:1], 72")
    e("v_lshrrev_b32 v1, 6, v0")
    e("v_and_b32 v2, 63, v0")
    e("s_nop 0")
    e("v_readfirstlane_b32 s33, v1")
    e(f"s_lshl_b32 s37, s{swg}, 3")
    e("s_add_u32 s37, s37, s33")
    e("s_and_b32 s38, s37, 63")
    e("s_mul_i32 s38, s38, 20544")
    e("s_cmp_lt_u32 s37, 64")
    e("s_waitcnt lgkmcnt(0)")
    e("s_cselect_b32 s12, s4, s6")
    e("s_cselect_b32 s13, s5, s7")
    e("s_add_u32 s14, s38, 20544")
    e("s_mov_b32 s15, 0x00020000")
    srd(e, 24, 8, WS_WMAX, 4096)
    e("v_lshlrev_b32 v3, 4, v2")
    for i in range(21):
        if i % 4 == 0 and i: e("s_add_u32 s38, s38, 4096")
        e(f"buffer_load_dwordx4 v[{16+4*i}:{19+4*i}], v3, s[12:15], s38 offen offset:{1024*(i%4)}")
    e("v_mov_b32 v11, 0x7fff7fff")
    e("s_waitcnt vmcnt(0)")
    for i in range(84):
        e(f"v_and_b32 v{16+i}, v11, v{16+i}")
    for i in range(1, 84):
        e(f"v_pk_max_u16 v16, v16, v{16+i}")
    e("v_lshrrev_b32 v33, 16, v16")
    e("v_and_b32 v32, 0xffff, v16")
    e("v_max_u32 v32, v32, v33")
    for sh in (8, 4, 2, 1):
        e("s_nop 1")
        e(f"v_max_u32_dpp v32, v32, v32 row_ror:{sh} row_mask:0xf bank_mask:0xf")
    for op in ("v_permlane16_swap_b32", "v_permlane32_swap_b32"):
        e("v_mov_b32 v33, v32")
        e("s_nop 1")
        e(f"{op} v33, v32")
        e("s_nop 0")
        e("v_max_u32 v32, v32, v33")
    e("s_lshl_b32 s42, s37, 2")
    e("v_mov_b32 v12, 0")
    e("s_mov_b64 exec, 1")
    e("buffer_store_dword v32, v12, s[24:27], s42 offen")
    e("s_endpgm")

def gen_k2(e, name="k2_kernel", stamps=False, side=True):
    st = Stamps(e, base=76, on=stamps)
    kernel_head(e, name)
    sU, sV, sWr, sWi, sT, sM = 12, 16, 20, 24, 28, 32
    e(f"s_cmp_ge_u32 s2, {252 if side else 192}")
    e(f"s_cbranch_scc1 {name}_END")
    if side:
        e("s_cmp_ge_u32 s2, 192")
        e(f"s_cbranch_scc1 {name}_RP")
    st(); st(True)
    e("s_load_dwordx4 s[4:7], s[0:1], 8")
    e("s_load_dwordx2 s[8:9], s[0:1], 72")
    table_srd(e, sT, "g64tab", 24576)
    e("v_lshrrev_b32 v1, 6, v0")
    e("v_and_b32 v2, 63, v0")
    e("v_lshlrev_b32 v3, 4, v2")
    e("v_readfirstlane_b32 s37, v1")
    e("s_mul_i32 s39, s2, 10923")
    e("s_lshr_b32 s39, s39, 16")
    e("s_mul_i32 s40, s39, 6")
    e("s_sub_u32 s40, s2, s40")
    e("v_and_b32 v4, 15, v2")
    e("v_lshrrev_b32 v5, 4, v2")
    e("v_mul_u32_u24 v6, 1408, v5")
    e("v_lshl_add_u32 v6, v4, 4, v6")
    e("s_lshl_b32 s41, s39, 6")
    e("s_lshl_b32 s42, s37, 4")
    e("s_add_u32 s41, s41, s42")
    e("s_mul_i32 s41, s41, 1408")
    e("s_lshl_b32 s42, s40, 8")
    e("s_add_u32 s41, s41, s42")
    e("v_lshrrev_b32 v7, 3, v2")
    e("v_mul_u32_u24 v7, 20544, v7")
    e("v_and_b32 v8, 7, v2")
    e("v_lshl_add_u32 v7, v8, 4, v7")
    e("s_mul_i32 s43, s39, 642")
    e("s_lshl_b32 s42, s40, 7")
    e("s_add_u32 s43, s43, s42")
    e("s_mul_i32 s42, s37, 328704")
    e("s_add_u32 s43, s43, s42")
    e("s_waitcnt lgkmcnt(0)")
    srd(e, sU, 8, WS_U, U_BYTES)
    e("s_lshl_b32 s36, s37, 12")
    for j in range(4):
        e(f"s_add_u32 m0, s36, {L2_U + 1024*j}")
        e(f"s_add_u32 s38, s41, {4*1408*j}")
        e(f"buffer_load_dwordx4 v6, s[{sU}:{sU+3}], s38 offen lds")
    e("s_mul_i32 s36, s37, 6144")
    for j in range(6):
        e(f"s_add_u32 m0, s36, {L2_C + 1024*j}")
        e(f"s_add_u32 s38, s36, {1024*j}")
        e(f"buffer_load_dwordx4 v3, s[{sT}:{sT+3}], s38 offen lds")
    srd(e, sWr, 4, 0, 2048*642 + 2)
    srd(e, sWi, 6, 0, 2048*642 + 2)
    e("s_lshl_b32 s36, s37, 11")
    for m, sr_ in enumerate((sWr, sWi)):
        for j in range(2):
            e(f"s_add_u32 m0, s36, {L2_W + 8192*m + 1024*j}")
            e(f"s_add_u32 s38, s43, {8*20544*j}")
            e(f"buffer_load_dwordx4 v7, s[{sr_}:{sr_+3}], s38 offen lds")
    srd(e, sM, 8, WS_WMAX, 512)
    MX = 48
    e(f"buffer_load_dwordx4 v[{MX}:{MX+3}], v3, s[{sM}:{sM+3}], 0 offen")
    srd(e, sV, 8, WS_V, U_BYTES)
    st()
    e("s_lshl_b32 s42, s40, 6")
    e("s_lshl_b32 s44, s37, 4")
    e("s_add_u32 s42, s42, s44")
    e("v_add_u32 v8, s42, v4")
    e("v_mov_b32 v11, 2.0")
    e("v_cmp_eq_u32 vcc, 0, v8")
    e("s_nop 1")
    e("v_cndmask_b32 v11, v11, 1.0, vcc")
    e("v_cmp_eq_u32 vcc, 320, v8")
    e("s_nop 1")
    e("v_cndmask_b32 v11, v11, 1.0, vcc")
    e("v_cmp_lt_u32 s[46:47], 320, v8") if False else None
    e("v_mov_b32 v9, 320")
    e("v_cmp_lt_u32 s[46:47], v9, v8")
    e("v_lshlrev_b32 v9, 10, v5")
    e("v_lshl_add_u32 v9, v4, 2, v9")
    e("s_lshl_b32 s44, s37, 6")
    e(f"s_add_u32 s44, s44, {L2_U}")
    e("v_add_u32 v9, s44, v9")
    e("v_lshrrev_b32 v10, 2, v4")
    e("v_lshl_add_u32 v10, v5, 2, v10")
    e("v_lshlrev_b32 v10, 7, v10")
    e("v_and_b32 v12, 3, v4")
    e("v_lshl_add_u32 v10, v12, 3, v10")
    e("s_lshl_b32 s44, s37, 5")
    e(f"s_add_u32 s44, s44, {L2_W}")
    e("v_add_u32 v10, s44, v10")
    e("s_mov_b32 s44, 0x05040100")
    e("s_mov_b32 s45, 0x07060302")
    e("s_waitcnt vmcnt(5)")
    e("s_barrier")
    st()
    UD = 16
    for i in range(16):
        e(f"ds_read_b32 v{UD+i}, v9 offset:{(16*(i>>2)+(i&3))*256}")
    C = 128
    for i in range(24):
        e(f"ds_read_b128 v[{C+4*i}:{C+4*i+3}], v3 offset:{L2_C + 1024*i}")
    e("s_waitcnt lgkmcnt(15)")
    e("s_waitcnt lgkmcnt(15)")
    BR, BI = 64, 72
    e("s_waitcnt lgkmcnt(8)")
    e("s_mov_b64 exec, s[46:47]")
    for i in range(16): e(f"v_mov_b32 v{UD+i}, 0")
    e("s_mov_b64 exec, -1")
    for i in range(8):
        e(f"v_perm_b32 v{BR+i}, v{UD+2*i+1}, v{UD+2*i}, s44")
        e(f"v_perm_b32 v{BI+i}, v{UD+2*i+1}, v{UD+2*i}, s45")
    DR, DI = 80, 96
    def cf(mat, mt4, t):
        b = C + 4 * ((mat * 4 + mt4) * 2 + t); return f"v[{b}:{b+3}]"
    def dft(inv):
        for mt4 in range(4):
            dr = f"v[{DR+4*mt4}:{DR+4*mt4+3}]"; di = f"v[{DI+4*mt4}:{DI+4*mt4+3}]"
            m_ri = 1 if inv else 2
            m_ir = 2 if inv else 1
            for t in range(2):
                br = f"v[{BR+4*t}:{BR+4*t+3}]"; bi = f"v[{BI+4*t}:{BI+4*t+3}]"
                e(f"v_mfma_f32_16x16x32_f16 {dr}, {cf(0,mt4,t)}, {br}, {dr if t else 0}")
                e(f"v_mfma_f32_16x16x32_f16 {di}, {cf(m_ir,mt4,t)}, {br}, {di if t else 0}")
                e(f"v_mfma_f32_16x16x32_f16 {dr}, {cf(m_ri,mt4,t)}, {bi}, {dr}")
                e(f"v_mfma_f32_16x16x32_f16 {di}, {cf(0,mt4,t)}, {bi}, {di}")
    e("s_waitcnt vmcnt(0) lgkmcnt(0)")
    e("s_barrier")
    WP = 32
    for m in range(2):
        for mt4 in range(4):
            e(f"ds_read_b64_tr_b16 v[{WP+8*m+2*mt4}:{WP+8*m+2*mt4+1}], v10 offset:{8192*m + 2048*mt4}")
    dft(False)
    for i in range(1, 4):
        e(f"v_max_u32 v{MX}, v{MX}, v{MX+i}")
    for sh in (8, 4, 2, 1):
        e("s_nop 1")
        e(f"v_max_u32_dpp v{MX}, v{MX}, v{MX} row_ror:{sh} row_mask:0xf bank_mask:0xf")
    for op in ("v_permlane16_swap_b32", "v_permlane32_swap_b32"):
        e(f"v_mov_b32 v{MX+1}, v{MX}")
        e("s_nop 1")
        e(f"{op} v{MX+1}, v{MX}")
        e("s_nop 0")
        e(f"v_max_u32 v{MX}, v{MX}, v{MX+1}")
    e(f"v_lshrrev_b32 v{MX}, 7, v{MX}")
    e(f"v_max_u32 v{MX}, 1, v{MX}")
    e(f"v_min_u32 v{MX}, 253, v{MX}")
    e(f"v_sub_u32 v{MX+1}, 254, v{MX}")
    e(f"v_lshlrev_b32 v{MX+1}, 23, v{MX+1}")
    e(f"v_lshlrev_b32 v{MX}, 23, v{MX}")
    e(f"v_mul_f32 v11, v11, v{MX+1}")
    e("s_or_b32 s38, s2, s37")
    e("s_cmp_lg_u32 s38, 0")
    e(f"s_cbranch_scc1 {name}_nosc")
    srd(e, sM, 8, WS_SC, 4)
    e("v_mov_b32 v12, 0")
    e("s_mov_b64 exec, 1")
    e(f"buffer_store_dword v{MX}, v12, s[{sM}:{sM+3}], 0 offen")
    e("s_mov_b64 exec, -1")
    e(f"{name}_nosc:")
    e("v_mov_b32 v12, 0xffff0000")
    e("s_waitcnt lgkmcnt(0)")
    WR, WI = 48, 112
    for i in range(8):
        e(f"v_lshlrev_b32 v{WR+2*i}, 16, v{WP+i}")
        e(f"v_and_b32 v{WR+2*i+1}, v12, v{WP+i}")
        e(f"v_lshlrev_b32 v{WI+2*i}, 16, v{WP+8+i}")
        e(f"v_and_b32 v{WI+2*i+1}, v12, v{WP+8+i}")
    e("s_mov_b64 exec, s[46:47]")
    for i in range(16):
        e(f"v_mov_b32 v{WR+i}, 0")
        e(f"v_mov_b32 v{WI+i}, 0")
    e("s_mov_b64 exec, -1")
    for i in range(16):
        e(f"v_mul_f32 v{WR+i}, v11, v{WR+i}")
        e(f"v_mul_f32 v{WI+i}, v11, v{WI+i}")
    YR, YI = 16, 32
    for i in range(16):
        e(f"v_mul_f32 v{YR+i}, v{DR+i}, v{WR+i}")
        e(f"v_mul_f32 v{YI+i}, v{DR+i}, v{WI+i}")
    for i in range(16):
        e(f"v_fma_f32 v{YR+i}, -v{DI+i}, v{WI+i}, v{YR+i}")
        e(f"v_fmac_f32 v{YI+i}, v{DI+i}, v{WR+i}")
    for i in range(8):
        e(f"v_cvt_pk_f16_f32 v{BR+i}, v{YR+2*i}, v{YR+2*i+1}")
        e(f"v_cvt_pk_f16_f32 v{BI+i}, v{YI+2*i}, v{YI+2*i+1}")
    e("s_nop 1")
    st()
    dft(True)
    e("s_cmp_eq_u32 s40, 5")
    e("s_cselect_b32 s38, 4, 16")
    e("v_cmp_le_u32 vcc, s38, v4")
    e("v_mov_b32 v12, 0x80000000")
    e("s_lshl_b32 s36, s37, 12")
    e(f"s_add_u32 s36, s36, {L2_U}")
    e("v_add_u32 v13, s36, v3")
    e("v_cndmask_b32 v6, v6, v12, vcc")
    e("s_nop 2")
    for i in range(16):
        e(f"v_cvt_pk_f16_f32 v{UD+i}, v{DR+i}, v{DI+i}")
        e(f"ds_write_b32 v9, v{UD+i} offset:{(16*(i>>2)+(i&3))*256}")
    e("s_waitcnt lgkmcnt(0)")
    e("s_barrier")
    for j in range(4):
        e(f"ds_read_b128 v[{32+4*j}:{35+4*j}], v13 offset:{1024*j}")
    for j in range(4):
        e(f"s_add_u32 s38, s41, {4*1408*j}")
        e(f"s_waitcnt lgkmcnt({3-j})")
        e(f"buffer_store_dwordx4 v[{32+4*j}:{35+4*j}], v6, s[{sV}:{sV+3}], s38 offen sc1")
    st()
    if stamps: e("s_waitcnt vmcnt(0)")
    st(); st(True)
    st.dump(name)
    e(f"{name}_END:")
    e("s_endpgm")
    if side:
        from side import gen_repack2
        e(f"{name}_RP:")
        e("s_sub_u32 s3, s2, 192")
        gen_repack2(e, f"{name}_rpk", 3, wshift=2, uoff=480)
    return name, 224
```

```python
from fw import *
import k4v4
import io

def gen_k45(e, name="k4_kernel", stamps=False, PD=3):
    t = Asm()
    k4v4.gen_k4(t, name, stamps=False)
    lines = t.lines
    end = max(i for i, l in enumerate(lines) if l.strip() == f"{name}_END:")
    body = lines[:end]
    body = [l + " sc1" if "buffer_store_dwordx2" in l else l for l in body]
    e.lines.extend(body)
    st = Stamps(e, base=76, on=stamps)
    sA, sW, sH, sO, sD = 12, 16, 20, 24, 52
    e("s_load_dwordx4 s[4:7], s[0:1], 56")
    e("s_cmp_ge_u32 s33, 4")
    e(f"s_cbranch_scc1 {name}_hi")
    e("s_and_b32 s31, s28, 1")
    e("s_lshl_b32 s32, s30, 1")
    e("s_add_u32 s32, s32, s31")
    e("s_lshr_b32 s31, s29, 2")
    e("v_mov_b32 v3, v4")
    e("s_mul_i32 s34, s32, 196608")
    e("s_mul_i32 s35, s33, 12288")
    e("s_add_u32 s34, s34, s35")
    e("s_mul_i32 s35, s31, 245760")
    e("s_mul_i32 s36, s33, 61440")
    e("s_add_u32 s35, s35, s36")
    srd(e, sA, 8, WS_A, A_BYTES)
    srd(e, sW, 8, WS_PD, PD_BYTES)
    srd(e, sH, 8, WS_H, H_BYTES)
    NS = PD + 1
    FB = 16
    ACC = (FB + 36*NS + 3) // 4 * 4
    def a_loads(s):
        F = FB + 36*(s % NS)
        return [[f"s_add_u32 s37, s34, {i*49152 + s*1024}",
                 f"buffer_load_dwordx4 v[{F+4*i}:{F+4*i+3}], v3, s[{sA}:{sA+3}], s37 offen sc1"] for i in range(4)]
    def w_loads(s):
        F = FB + 36*(s % NS)
        return [[f"s_add_u32 s37, s35, {s*5120 + (t//4)*4096}" if t % 4 == 0 else "",
                 f"buffer_load_dwordx4 v[{F+16+4*t}:{F+16+4*t+3}], v3, s[{sW}:{sW+3}], s37 offen offset:{(t%4)*1024}"] for t in range(5)]
    def emit(L):
        for blk in L:
            for ins in blk:
                if ins: e(ins)
    e("s_nop 1")
    for s in range(PD): emit(w_loads(s))
    e(f"s_waitcnt vmcnt({5*PD}) lgkmcnt(0)")
    e("s_barrier")
    srd(e, sO, 4, 0, H_BYTES)
    e("s_cmp_lg_u32 s33, 0")
    e(f"s_cbranch_scc1 {name}_w")
    srd(e, sD, 6, 0, 256)
    e("s_lshl_b32 s37, s30, 4")
    e("v_mov_b32 v5, s37")
    e("v_mov_b32 v6, 1")
    e("s_mov_b64 exec, 1")
    e(f"buffer_atomic_add v6, v5, s[{sD}:{sD+3}], 0 offen")
    e(f"{name}_poll:")
    e("s_sleep 1")
    e(f"buffer_load_dword v6, v5, s[{sD}:{sD+3}], 0 offen sc1")
    e("s_waitcnt vmcnt(0)")
    e("v_readfirstlane_b32 s37, v6")
    e("s_cmp_lt_u32 s37, 16")
    e(f"s_cbranch_scc1 {name}_poll")
    e("s_mov_b64 exec, -1")
    e(f"{name}_w:")
    e("v_and_b32 v11, 15, v2")
    e("v_lshrrev_b32 v12, 4, v2")
    e("s_lshl_b32 s37, s32, 6")
    e("s_lshl_b32 s38, s33, 4")
    e("s_add_u32 s37, s37, s38")
    e("v_add_u32 v10, s37, v11")
    e("v_mul_u32_u24 v10, 1280, v10")
    e("v_lshl_add_u32 v10, v12, 3, v10")
    e("s_mul_i32 s37, s31, 160")
    e("v_add_u32 v10, s37, v10")
    e("s_barrier")
    for s in range(PD): emit(a_loads(s))
    for s in range(12):
        F = FB + 36*(s % NS)
        if s < PD:
            after = 4*(PD-1-s) + 9*s if True else 0
            after = 4*(PD-1-s) + 9*min(s, max(0, 12-PD))
        else:
            issued_groups = min(12-PD, s)
            after = 9*(PD + issued_groups - 1 - s)
        e(f"s_waitcnt vmcnt({after})")
        Ld = (a_loads(s+PD) + w_loads(s+PD)) if s + PD < 12 else []
        k = 0
        for i in range(4):
            for t in range(5):
                d = ACC + (i*5+t)*4
                c = "0" if s == 0 else f"v[{d}:{d+3}]"
                e(f"v_mfma_f32_16x16x32_bf16 v[{d}:{d+3}], v[{F+16+4*t}:{F+16+4*t+3}], v[{F+4*i}:{F+4*i+3}], {c}")
                if k % 2 == 1 and k // 2 < len(Ld):
                    for ins in Ld[k // 2]:
                        if ins: e(ins)
                k += 1
    e("s_mul_i32 s37, s33, 20480")
    e("v_add_u32 v14, s37, v3")
    e("s_mul_i32 s37, s33, 5120")
    e("v_add_u32 v15, s37, v3")
    e("v_add_u32 v13, 40960, v15")
    HB = 96
    for t in range(5):
        e(f"buffer_load_dwordx2 v[{HB+2*t}:{HB+2*t+1}], v10, s[{sH}:{sH+3}], 0 offen offset:{32*t}")
    e("s_nop 4")
    for tile in range(20):
        e(f"ds_write_b128 v14, v[{ACC+4*tile}:{ACC+4*tile+3}] offset:{tile*1024}")
    e("s_waitcnt lgkmcnt(0)")
    e("s_barrier")
    R = 16
    for t in range(5):
        for w in range(4):
            e(f"ds_read_b128 v[{R+(t*4+w)*4}:{R+(t*4+w)*4+3}], v{15 if w < 2 else 13} offset:{t*1024 + (w&1)*20480}")
    e("v_mov_b32 v9, 0xffff0000")
    e("s_waitcnt vmcnt(0) lgkmcnt(0)")
    for t in range(5):
        b = R + t*16
        for r in range(4):
            e(f"v_add_f32 v{b+r}, v{b+r}, v{b+4+r}")
            e(f"v_add_f32 v{b+8+r}, v{b+8+r}, v{b+12+r}")
        for r in range(4):
            e(f"v_add_f32 v{b+r}, v{b+r}, v{b+8+r}")
        e(f"v_cvt_pk_bf16_f32 v{b+4}, v{b}, v{b+1}")
        e(f"v_cvt_pk_bf16_f32 v{b+5}, v{b+2}, v{b+3}")
        for r in range(4):
            src = b + 4 + (r >> 1)
            if r & 1: e(f"v_and_b32 v{b+8+r}, v9, v{src}")
            else: e(f"v_lshlrev_b32 v{b+8+r}, 16, v{src}")
            src = HB + 2*t + (r >> 1)
            if r & 1: e(f"v_and_b32 v{b+12+r}, v9, v{src}")
            else: e(f"v_lshlrev_b32 v{b+12+r}, 16, v{src}")
        for r in range(4):
            e(f"v_add_f32 v{b+8+r}, v{b+8+r}, v{b+12+r}")
        e(f"v_cvt_pk_bf16_f32 v{b}, v{b+8}, v{b+9}")
        e(f"v_cvt_pk_bf16_f32 v{b+1}, v{b+10}, v{b+11}")
        e(f"buffer_store_dwordx2 v[{b}:{b+1}], v10, s[{sO}:{sO+3}], 0 offen offset:{32*t}")
    e("s_endpgm")
    e(f"{name}_hi:")
    e("s_waitcnt vmcnt(0) lgkmcnt(0)")
    e("s_barrier")
    e(f"{name}_END:")
    e("s_endpgm")
    return name, ACC + 80
```

```python
from fw import *
from k2v2 import task_decode

def gen_repack2(e, lbl, swg, wshift=3, uoff=0):
    e(f"{lbl}:")
    e("s_load_dwordx4 s[4:7], s[0:1], 32")
    e("s_load_dwordx2 s[8:9], s[0:1], 48")
    e("s_load_dwordx2 s[10:11], s[0:1], 72")
    e("v_lshrrev_b32 v1, 6, v0")
    e("v_and_b32 v2, 63, v0")
    e("s_nop 0")
    e("v_readfirstlane_b32 s33, v1")
    e(f"s_lshl_b32 s34, s{swg}, {wshift}")
    e("s_add_u32 s34, s34, s33")
    if uoff: e(f"s_add_u32 s34, s34, {uoff}")
    e("s_cmp_ge_u32 s34, 480")
    e(f"s_cbranch_scc1 {lbl}_down")
    e("s_cmp_ge_u32 s34, 240")
    e("s_cselect_b32 s35, 1, 0")
    e("s_mul_i32 s36, s35, 240")
    e("s_sub_u32 s34, s34, s36")
    e("s_mul_i32 s36, s34, 5462")
    e("s_lshr_b32 s36, s36, 16")
    e("s_mul_i32 s37, s36, 12")
    e("s_sub_u32 s37, s34, s37")
    e("s_mov_b32 s38, 3072")
    e("s_mov_b32 s46, 1024")
    e("s_mov_b32 s47, 3")
    for i in range(8):
        e(f"s_lshl_b32 s40, s37, 3")
        e(f"s_add_u32 s40, s40, {i}")
        e("s_mul_i32 s41, s40, 10923")
        e("s_lshr_b32 s41, s41, 16")
        e("s_mul_i32 s42, s41, 6")
        e("s_sub_u32 s42, s40, s42")
        e("s_mul_i32 s41, s41, 10")
        e("s_lshr_b32 s43, s36, 1")
        e("s_add_u32 s41, s41, s43")
        e("s_lshl_b32 s41, s41, 1")
        e("s_add_u32 s41, s41, s35")
        e("s_lshl_b32 s41, s41, 1")
        e("s_and_b32 s43, s36, 1")
        e("s_add_u32 s41, s41, s43")
        e("s_mul_i32 s41, s41, 6")
        e("s_add_u32 s41, s41, s42")
        e(f"s_lshl_b32 s{50+i}, s41, 10")
    e("s_waitcnt lgkmcnt(0)")
    e("s_cmp_eq_u32 s35, 0")
    e("s_cselect_b32 s12, s4, s6")
    e("s_cselect_b32 s13, s5, s7")
    e(f"s_mov_b32 s14, {640*3072}")
    e("s_mov_b32 s15, 0x00020000")
    srd(e, 16, 10, WS_PG, PG_BYTES)
    e(f"s_branch {lbl}_go")
    e(f"{lbl}_down:")
    e("s_sub_u32 s34, s34, 480")
    e("s_mul_i32 s36, s34, 13108")
    e("s_lshr_b32 s36, s36, 16")
    e("s_mul_i32 s37, s36, 5")
    e("s_sub_u32 s37, s34, s37")
    e("s_mov_b32 s38, 1280")
    e("s_mov_b32 s46, 4096")
    e("s_mov_b32 s47, 2")
    for i in range(8):
        e(f"s_lshl_b32 s40, s37, 3")
        e(f"s_add_u32 s40, s40, {i}")
        e("s_mul_i32 s41, s40, 13108")
        e("s_lshr_b32 s41, s41, 16")
        e("s_mul_i32 s42, s41, 5")
        e("s_sub_u32 s42, s40, s42")
        e("s_mul_i32 s41, s41, 48")
        e("s_add_u32 s41, s41, s36")
        e("s_mul_i32 s41, s41, 5")
        e("s_add_u32 s41, s41, s42")
        e(f"s_lshl_b32 s{50+i}, s41, 10")
    e("s_waitcnt lgkmcnt(0)")
    e("s_mov_b32 s12, s8")
    e("s_mov_b32 s13, s9")
    e(f"s_mov_b32 s14, {1536*1280}")
    e("s_mov_b32 s15, 0x00020000")
    srd(e, 16, 10, WS_PD, PD_BYTES)
    e(f"{lbl}_go:")
    e("v_lshrrev_b32 v3, 4, v2")
    e("v_mul_lo_u32 v3, v3, s38")
    e("v_and_b32 v4, 15, v2")
    e("v_lshl_add_u32 v3, v4, 4, v3")
    e("s_lshl_b32 s40, s36, 5")
    e("s_mul_i32 s40, s40, s38")
    e("s_lshl_b32 s41, s37, 8")
    e("s_add_u32 s40, s40, s41")
    e("s_lshl_b32 s41, s38, 2")
    e("s_lshl_b32 s42, s33, 13")
    for j in range(8):
        e(f"s_add_u32 m0, s42, {1024*j}")
        e("s_nop 0")
        e(f"buffer_load_dwordx4 v3, s[12:15], s40 offen lds")
        if j < 7: e("s_add_u32 s40, s40, s41")
    e("v_lshrrev_b32 v5, 4, v2")
    e("v_lshlrev_b32 v5, s47, v5")
    e("v_lshrrev_b32 v6, 2, v4")
    e("v_add_u32 v5, v5, v6")
    e("v_lshlrev_b32 v5, 8, v5")
    e("v_and_b32 v6, 3, v4")
    e("v_lshl_add_u32 v5, v6, 3, v5")
    e("v_add_u32 v5, s42, v5")
    e("v_add_u32 v6, s46, v5")
    e("v_lshlrev_b32 v7, 4, v2")
    e("s_waitcnt vmcnt(0)")
    for i in range(8):
        e(f"ds_read_b64_tr_b16 v[{8+4*i}:{9+4*i}], v5 offset:{32*i}")
        e(f"ds_read_b64_tr_b16 v[{10+4*i}:{11+4*i}], v6 offset:{32*i}")
    for i in range(8):
        e(f"s_waitcnt lgkmcnt({14-2*i})")
        e(f"buffer_store_dwordx4 v[{8+4*i}:{11+4*i}], v7, s[16:19], s{50+i} offen")
    e("s_endpgm")

def gen_wprep3(e, lbl, swg):
    e(f"{lbl}:")
    e("s_load_dwordx4 s[4:7], s[0:1], 8")
    e("s_load_dwordx2 s[8:9], s[0:1], 72")
    e("v_lshrrev_b32 v1, 6, v0")
    e("v_and_b32 v2, 63, v0")
    e("s_nop 0")
    e("v_readfirstlane_b32 s33, v1")
    e(f"s_lshl_b32 s37, s{swg}, 3")
    e("s_add_u32 s37, s37, s33")
    e("s_mul_i32 s38, s37, 3")
    task_decode(e, 38, 39, 40)
    e("v_and_b32 v4, 15, v2")
    e("v_lshrrev_b32 v5, 4, v2")
    e("s_lshl_b32 s41, s40, 4")
    e("v_add_u32 v6, s41, v4")
    e("v_lshl_add_u32 v8, v5, 7, s39")
    e("v_mul_u32_u24 v8, 642, v8")
    e("v_lshl_add_u32 v8, v6, 1, v8")
    e("v_cmp_lt_u32 vcc, 288, v6")
    e("v_mov_b32 v10, 0x80000000")
    e("v_cndmask_b32 v9, v8, v10, vcc")
    e("s_waitcnt lgkmcnt(0)")
    srd(e, 12, 4, 0, 2048*642)
    srd(e, 16, 6, 0, 2048*642)
    srd(e, 20, 8, WS_WP, WP_BYTES)
    srd(e, 24, 8, WS_WMAX, 4096)
    for i in range(16):
        e(f"s_mov_b32 s42, {(16*(i>>2)+(i&3))*32*642}")
        for k in range(3):
            e(f"buffer_load_ushort v{16+32*k+i}, v{9 if k == 2 else 8}, s[12:15], s42 offen offset:{32*k}")
            e(f"buffer_load_ushort v{32+32*k+i}, v{9 if k == 2 else 8}, s[16:19], s42 offen offset:{32*k}")
    e("v_lshlrev_b32 v3, 4, v2")
    e("s_lshl_b32 s42, s38, 12")
    e("v_mov_b32 v11, 0x7fff7fff")
    e("s_waitcnt vmcnt(0)")
    for k in range(3):
        b = 16 + 32*k
        for i in range(16):
            e(f"v_lshl_or_b32 v{b+i}, v{b+16+i}, 16, v{b+i}")
        if k: e("s_add_u32 s42, s42, 4096")
        for i in range(4):
            e(f"buffer_store_dwordx4 v[{b+4*i}:{b+4*i+3}], v3, s[20:23], s42 offen offset:{1024*i}")
        for i in range(16):
            e(f"v_and_b32 v{b+16+i}, v11, v{b+i}")
    for k in range(3):
        for i in range(16):
            if k == 0 and i == 0: continue
            e(f"v_pk_max_u16 v32, v32, v{32+32*k+i}")
    e("v_lshrrev_b32 v33, 16, v32")
    e("v_and_b32 v32, 0xffff, v32")
    e("v_max_u32 v32, v32, v33")
    for sh in (8, 4, 2, 1):
        e("s_nop 1")
        e(f"v_max_u32_dpp v32, v32, v32 row_ror:{sh} row_mask:0xf bank_mask:0xf")
    for op in ("v_permlane16_swap_b32", "v_permlane32_swap_b32"):
        e("v_mov_b32 v33, v32")
        e("s_nop 1")
        e(f"{op} v33, v32")
        e("s_nop 0")
        e("v_max_u32 v32, v32, v33")
    e("s_lshl_b32 s42, s37, 2")
    e("v_mov_b32 v12, 0")
    e("s_mov_b64 exec, 1")
    e("buffer_store_dword v32, v12, s[24:27], s42 offen")
    e("s_endpgm")
```

```python
import numpy as np
def f16bits(a):
    return np.asarray(a, dtype=np.float64).astype(np.float16).view(np.uint16)

def g64_table():
    out = np.zeros((3, 4, 2, 64, 8), dtype=np.float64)
    for mt4 in range(4):
        for t in range(2):
            for l in range(64):
                m = l & 15; q4 = l >> 4
                bp = 16 * mt4 + m
                for j in range(8):
                    b = 32 * t + 16 * (j >> 2) + 4 * q4 + (j & 3)
                    ang = 2 * np.pi * ((b * bp) % 64) / 64
                    c = np.cos(ang) / 8; s = np.sin(ang) / 8
                    if (b*bp) % 16 == 0:
                        c = np.round(c*8)/8; s = np.round(s*8)/8
                    out[0, mt4, t, l, j] = c
                    out[1, mt4, t, l, j] = -s
                    out[2, mt4, t, l, j] = s
    return f16bits(out)

NSTEP = [6, 5, 5, 5]
def row_tables():
    tiles = []
    sc = 1 / np.sqrt(640.0)
    for j in range(11):
        parts = []
        for g in range(4):
            a = np.zeros((NSTEP[g], 64, 8))
            for t in range(NSTEP[g]):
                for l in range(64):
                    p = 16 * j + (l & 15); q4 = l >> 4
                    if p > 160: continue
                    for jj in range(8):
                        q = 32 * t + 8 * q4 + jj
                        if g == 0:
                            if q > 160: continue
                            n = 2 * q
                        elif g == 2:
                            if q > 159: continue
                            n = 2 * q
                        else:
                            n = 2 * q + 1
                        r = (p * n) % 640
                        ang = 2 * np.pi * r / 640
                        v = np.cos(ang) if g < 2 else np.sin(ang)
                        if r % 160 == 0: v = np.round(v)
                        a[t, l, jj] = v * sc
            parts.append(a.reshape(-1))
        tiles.append(np.concatenate(parts))
    return f16bits(np.stack(tiles))

def emit_data(label, arr16):
    b = np.ascontiguousarray(arr16).view(np.uint64).reshape(-1)
    out = [f".p2align 8\n{label}:"]
    i = 0; n = len(b)
    line = []
    while i < n:
        if b[i] == 0:
            j = i
            while j < n and b[j] == 0: j += 1
            if j - i >= 4:
                if line: out.append(".quad " + ",".join(line)); line = []
                out.append(f".zero {8*(j-i)}")
                i = j; continue
        line.append(f"0x{int(b[i]):x}")
        if len(line) == 16:
            out.append(".quad " + ",".join(line)); line = []
        i += 1
    if line: out.append(".quad " + ",".join(line))
    return "\n".join(out) + "\n"

def k3_table():
    out = np.zeros((16, 64, 8), dtype=np.uint16)
    def ex(a, den, num):
        r = num % den
        c = np.cos(2*np.pi*r/den); s = np.sin(2*np.pi*r/den)
        if (4*r) % den == 0: c = np.round(c); s = np.round(s)
        return c, s
    for nt2 in range(2):
        for ri in range(2):
            f = np.zeros((64, 8))
            for l in range(64):
                db = 16*nt2 + (l & 15); q4 = l >> 4
                if db >= 20: continue
                for j in range(8):
                    kb = 4*q4 + (j & 3); c_in = j >> 2
                    if kb > 10: continue
                    c, s = ex(0, 20, kb*db)
                    if ri == 0: f[l, j] = c if c_in == 0 else -s
                    else:       f[l, j] = s if c_in == 0 else c
            out[nt2*2+ri] = f16bits(f)
    sc = 1/np.sqrt(640.0)
    for mo in range(2):
        for mt in range(2):
            f = np.zeros((64, 8))
            for l in range(64):
                da = 16*mo + (l & 15); q4 = l >> 4
                for j in range(8):
                    ka = 16*mt + 4*q4 + (j >> 1); c_in = j & 1
                    c, s = ex(0, 32, ka*da)
                    f[l, j] = (c if c_in == 0 else -s) * sc
            out[4 + mo*2 + mt] = f16bits(f)
    tw = np.zeros((64, 32), dtype=np.float32)
    for l in range(64):
        q4 = l >> 4
        for mt in range(2):
            for nt2 in range(2):
                db = 16*nt2 + (l & 15)
                for r in range(4):
                    ka = 16*mt + 4*q4 + r
                    c, s = ex(0, 640, ka*db)
                    tw[l, ((mt*2+nt2)*4+r)*2] = c; tw[l, ((mt*2+nt2)*4+r)*2+1] = s
    for i in range(8):
        out[8+i] = tw[:, 4*i:4*i+4].copy().view(np.uint16).reshape(64, 8)
    return out

def k1_table():
    out = np.zeros((16, 64, 8), dtype=np.uint16)
    def ex(den, num):
        r = num % den
        c = np.cos(2*np.pi*r/den); s = np.sin(2*np.pi*r/den)
        if (4*r) % den == 0: c = np.round(c); s = np.round(s)
        return c, s
    sc = 1/np.sqrt(640.0)
    for nt in range(2):
        for ri in range(2):
            f = np.zeros((64, 8))
            for l in range(64):
                ka = 16*nt + (l & 15); q4 = l >> 4
                for j in range(8):
                    da = 8*q4 + j
                    c, s = ex(32, ka*da)
                    f[l, j] = (c if ri == 0 else -s) * sc
            out[nt*2+ri] = f16bits(f)
    for ri in range(2):
        for mt in range(2):
            f = np.zeros((64, 8))
            for l in range(64):
                kb = l & 15; q4 = l >> 4
                if kb > 10: continue
                for j in range(8):
                    db = 16*mt + 4*q4 + (j >> 1); c_in = j & 1
                    if db >= 20: continue
                    c, s = ex(20, kb*db)
                    if ri == 0: f[l, j] = c if c_in == 0 else s
                    else:       f[l, j] = -s if c_in == 0 else c
            out[4 + ri*2 + mt] = f16bits(f)
    tw = np.zeros((64, 32), dtype=np.float32)
    for l in range(64):
        q4 = l >> 4
        for mt in range(2):
            for nt in range(2):
                ka = 16*nt + (l & 15)
                for r in range(4):
                    db = 16*mt + 4*q4 + r
                    c, s = ex(640, ka*db)
                    tw[l, ((mt*2+nt)*4+r)*2] = c; tw[l, ((mt*2+nt)*4+r)*2+1] = s
    for i in range(8):
        out[8+i] = tw[:, 4*i:4*i+4].copy().view(np.uint16).reshape(64, 8)
    return out
```

```python
from fw import *
import k1v2, k2v3, k3h, k4v4, k5v3, k45m
from k1 import PITCH
from tables import *
import sys
def build(out, merge45=True):
    e = Asm()
    ref = open("sequential_preLN__spectral_gfnet__geglu_ffn__prompt.s.ref").read()
    head = "".join(l + "\n" for l in ref.split("\n") if l.startswith(";") and "@launch" not in l)
    hdr = head + f"""; @launch kernel=k1_kernel grid=(204,1,1) block=(512,1,1) lds=65536
; @launch kernel=k2_kernel grid=(252,1,1) block=(256,1,1) lds={k2v3.K2_LDS}
; @launch kernel=k3_kernel grid=(256,1,1) block=(512,1,1) lds={k3h.K3H_LDS}
; @launch kernel=k4_kernel grid=(256,1,1) block=(512,1,1) lds=122880
"""
    if not merge45: hdr += "; @launch kernel=k5_kernel grid=(256,1,1) block=(256,1,1) lds=81920\n"
    hdr += """.amdgcn_target "amdgcn-amd-amdhsa--gfx950"
.text
"""
    ks = [k1v2.gen_k1(e), k2v3.gen_k2(e), k3h.gen_k3(e)]
    ks += [k45m.gen_k45(e)] if merge45 else [k4v4.gen_k4(e), k5v3.gen_k5(e)]
    txt = hdr + e.text() + '.section .rodata,"a"\n' + "".join(kd(n, v) for n, v in ks) + emit_data("g64tab", g64_table()) + emit_data("rowtab", row_tables()) + emit_data("k3tab", k3_table())
    open(out, "w").write(txt)
if __name__ == "__main__":
    build("a_v10.s", False)
```
